```python
import torch

def _softmax(x, axis=-1):
    return torch.softmax(x, dim=axis)

def _gelu(x):
    return torch.nn.functional.gelu(x, approximate='tanh')

def _silu(x):
    return torch.nn.functional.silu(x)

def _sigmoid(x):
    return torch.sigmoid(x)

def _layernorm(x, axis=-1, eps=1e-05):
    m = x.mean(dim=axis, keepdim=True)
    v = x.var(dim=axis, keepdim=True, unbiased=False)
    return (x - m) / torch.sqrt(v + eps)

def _scatter_add(tgt, idx, src, axis=0):
    return tgt.clone().index_add_(axis, idx, src)

def _segment_sum(src, seg, n):
    out = torch.zeros((n,) + src.shape[1:], dtype=src.dtype)
    return out.index_add_(0, seg, src)

def _pad(x, pw):
    flat = tuple((v for pair in reversed(pw) for v in pair))
    return torch.nn.functional.pad(x, flat)
kernel_name = 'gated_mix__ssm_conv_s5__memory_aug_recurrent_mem_tr__prompt'

def setup_inputs():

    _w = lambda a: (lambda t: t.to(torch.bfloat16) if t.is_floating_point() else t)(torch.as_tensor(a))

    def _A_setup():
        B, S, D = (1, 2048, 448)
        P = D
        Lambda_re = -0.5 * (lambda _x: torch.exp(torch.as_tensor(_x)))((lambda *s: torch.randn(*s, dtype=torch.bfloat16) * 0.8)(P))
        Lambda_im = (lambda *s: torch.randn(*s, dtype=torch.bfloat16) * 0.8)(P) * 1.0
        B_re = (lambda *s: torch.randn(*s, dtype=torch.bfloat16) * 0.8)(P, D) * D ** (-0.5)
        B_im = (lambda *s: torch.randn(*s, dtype=torch.bfloat16) * 0.8)(P, D) * D ** (-0.5)
        C_re = (lambda *s: torch.randn(*s, dtype=torch.bfloat16) * 0.8)(D, P) * P ** (-0.5)
        C_im = (lambda *s: torch.randn(*s, dtype=torch.bfloat16) * 0.8)(D, P) * P ** (-0.5)
        log_dt = (lambda *s: torch.randn(*s, dtype=torch.bfloat16) * 0.8)(P) * 0.3 - 2.0
        Dskip = (lambda *s: torch.randn(*s, dtype=torch.bfloat16) * 0.8)(D)
        return {'x': _w((lambda *s: torch.randn(*s, dtype=torch.bfloat16) * 0.05)(B, S, D)), 'Lambda_re': _w(Lambda_re), 'Lambda_im': _w(Lambda_im), 'B_re': _w(B_re), 'B_im': _w(B_im), 'C_re': _w(C_re), 'C_im': _w(C_im), 'log_dt': _w(log_dt), 'Dskip': _w(Dskip)}
    _A_in = _A_setup()

    def _B_setup():
        B, S, Dm = (1, 2048, 448)
        H, Dh = (16, 256)
        M, seg = (8, 32)
        seg = min(seg, S)
        S = S // seg * seg
        return {'x': _w((lambda *s: torch.randn(*s, dtype=torch.bfloat16) * 0.05)(B, S, Dm)), 'mem0': _w((lambda *s: torch.randn(*s, dtype=torch.bfloat16) * 0.8)(B, M, Dm)), 'Wq': _w((lambda *s: torch.randn(*s, dtype=torch.bfloat16) * 3.2)(Dm, H, Dh) * Dm ** (-0.5)), 'Wk': _w((lambda *s: torch.randn(*s, dtype=torch.bfloat16) * 3.2)(Dm, H, Dh) * Dm ** (-0.5)), 'Wv': _w((lambda *s: torch.randn(*s, dtype=torch.bfloat16) * 0.8)(Dm, H, Dh) * Dm ** (-0.5)), 'Wo': _w((lambda *s: torch.randn(*s, dtype=torch.bfloat16) * 0.8)(H, Dh, Dm) * (H * Dh) ** (-0.5)), 'seg_len': seg}
    _B_in = _B_setup()
    return {'A_x': _A_in['x'], 'A_Lambda_re': _A_in['Lambda_re'], 'A_Lambda_im': _A_in['Lambda_im'], 'A_B_re': _A_in['B_re'], 'A_B_im': _A_in['B_im'], 'A_C_re': _A_in['C_re'], 'A_C_im': _A_in['C_im'], 'A_log_dt': _A_in['log_dt'], 'A_Dskip': _A_in['Dskip'], 'B_x': _B_in['x'], 'B_mem0': _B_in['mem0'], 'B_Wq': _B_in['Wq'], 'B_Wk': _B_in['Wk'], 'B_Wv': _B_in['Wv'], 'B_Wo': _B_in['Wo'], 'B_seg_len': _B_in['seg_len'], 'gate_w': _w((lambda *s: torch.randn(*s, dtype=torch.bfloat16) * 0.05)(448) * 16.0)}

def reference(A_x, A_Lambda_re, A_Lambda_im, A_B_re, A_B_im, A_C_re, A_C_im, A_log_dt, A_Dskip, B_x, B_mem0, B_Wq, B_Wk, B_Wv, B_Wo, B_seg_len, gate_w):

    def _A_ref(x, Lambda_re, Lambda_im, B_re, B_im, C_re, C_im, log_dt, Dskip):
        Bsz, L, H = x.shape
        Lam = Lambda_re + 1j * Lambda_im
        Bmat = B_re + 1j * B_im
        Cmat = C_re + 1j * C_im
        dt = torch.exp(log_dt)
        Lam_bar = torch.exp(dt * Lam)
        B_bar = ((Lam_bar - 1.0) / Lam)[:, None] * Bmat
        Bu = torch.einsum('bld,pd->blp', x + 0j, B_bar)
        h = torch.zeros_like(Bu[:, 0, :])
        hs = []
        for t in range(L):
            h = Lam_bar[None, :] * h + Bu[:, t, :]
            hs.append(h)
        hseq = torch.stack(hs, 1)
        y = 2.0 * torch.einsum('blp,dp->bld', hseq, Cmat).real + x * Dskip[None, None, :]
        return y

    def _B_ref(x, mem0, Wq, Wk, Wv, Wo, seg_len):
        B, S, Dm = x.shape
        H, Dh = (Wq.shape[1], Wq.shape[2])
        M = mem0.shape[1]
        scale = Dh ** (-0.5)
        n_seg = S // seg_len
        L = M + seg_len
        idx = torch.arange(L)
        mask = (idx[:, None] < M) | (idx[:, None] >= idx[None, :])
        mem = mem0
        outs = []
        for s in range(n_seg):
            xs = x[:, s * seg_len:(s + 1) * seg_len, :].clone()
            h = torch.concatenate([mem, xs], axis=1)
            q = torch.einsum('btd,dhe->bhte', h, Wq)
            k = torch.einsum('btd,dhe->bhte', h, Wk)
            v = torch.einsum('btd,dhe->bhte', h, Wv)
            scores = torch.einsum('bhqe,bhke->bhqk', q, k) * scale
            scores = torch.where(mask[None, None], scores, -1000000000.0)
            p = _softmax(scores, axis=-1)
            o = torch.einsum('bhqk,bhke->bhqe', p, v)
            o = torch.einsum('bhte,hed->btd', o, Wo)
            mem = o[:, :M, :].clone()
            outs.append(o[:, M:, :])
        return torch.concatenate(outs, axis=1)
    x = A_x
    g = _sigmoid((x * gate_w).sum(-1, keepdims=True))
    a = _A_ref(x, A_Lambda_re, A_Lambda_im, A_B_re, A_B_im, A_C_re, A_C_im, A_log_dt, A_Dskip)
    b = _B_ref(x, B_mem0, B_Wq, B_Wk, B_Wv, B_Wo, B_seg_len)
    return g * a + (1 - g) * b
```

```python
from common import *
import os
OOB = 0x20000000
DEFP = int(os.environ.get('DEFP', 3))
EXP = int(os.environ.get('EXP', 8))
class LG:
    def __init__(s, A): s.A = A; s.q = []
    def op(s, txt, tag=None): s.A(txt); s.q.append(tag)
    def wait(s, tag):
        idx = [i for i, t in enumerate(s.q) if t == tag]
        if not idx: return
        n = len(s.q) - 1 - idx[-1]
        s.A(f"s_waitcnt lgkmcnt({min(n, 15)})");
        if n <= 15: s.q = s.q[idx[-1]+1:]
    def all(s): s.A("s_waitcnt lgkmcnt(0)"); s.q = []

def poll_m(A, tag, vo1, vo2, soff, r, pre=None):
    A.lab(tag)
    A(f"buffer_load_dwordx4 {vr(r,4)}, {vo1}, s[4:7], {soff} offen sc1", f"buffer_load_dwordx4 {vr(r+4,4)}, {vo2}, s[4:7], {soff} offen sc1",
      "s_waitcnt vmcnt(0)",
      f"v_max3_u32 v10, v{r}, v{r+1}, v{r+2}", f"v_max3_u32 v11, v{r+3}, v{r+4}, v{r+5}", f"v_max3_u32 v10, v10, v{r+6}, v{r+7}", "v_max_u32 v10, v10, v11",
      "v_cmp_eq_u32 vcc, -1, v10", f"s_cbranch_vccz {tag}_ok", "s_sub_u32 s23, s23, 1", "s_cmp_gt_i32 s23, 0", f"s_cbranch_scc1 {tag}")
    A.lab(tag + "_ok")
    A(f"ds_write_b128 v9, {vr(r,4)}", f"ds_write_b128 v9, {vr(r+4,4)} offset:4096")
    if pre: pre()
    A("s_waitcnt lgkmcnt(0)", "s_barrier")

def poll_m2(A, tag, vo1, vo2, soff, r0, r1):
    def issue(r): A(f"buffer_load_dwordx4 {vr(r,4)}, {vo1}, s[4:7], {soff} offen sc1", f"buffer_load_dwordx4 {vr(r+4,4)}, {vo2}, s[4:7], {soff} offen sc1")
    def check(r, ok):
        A("s_waitcnt vmcnt(2)", f"v_max3_u32 v10, v{r}, v{r+1}, v{r+2}", f"v_max3_u32 v11, v{r+3}, v{r+4}, v{r+5}", f"v_max3_u32 v10, v10, v{r+6}, v{r+7}",
          "v_max_u32 v10, v10, v11", "v_cmp_eq_u32 vcc, -1, v10", f"s_cbranch_vccz {ok}")
    issue(r0)
    A.lab(tag)
    issue(r1); check(r0, tag + "_k0")
    issue(r0); check(r1, tag + "_k1")
    A("s_sub_u32 s23, s23, 1", "s_cmp_gt_i32 s23, 0", f"s_cbranch_scc1 {tag}")
    A.lab(tag + "_k1")
    A(f"ds_write_b128 v9, {vr(r1,4)}", f"ds_write_b128 v9, {vr(r1+4,4)} offset:4096", f"s_branch {tag}_ok")
    A.lab(tag + "_k0")
    A(f"ds_write_b128 v9, {vr(r0,4)}", f"ds_write_b128 v9, {vr(r0+4,4)} offset:4096")
    A.lab(tag + "_ok")
    A("s_waitcnt lgkmcnt(0)", "s_barrier")

def common_addr(A):
    A("v_lshlrev_b32 v5, 4, v1", "v_lshlrev_b32 v9, 4, v0", "v_mov_b32 v6, v9", "v_add_u32 v7, 4096, v9",
      "v_cmp_gt_u32 vcc, 192, v0", f"v_mov_b32 v10, {OOB}", "s_nop 1", "v_cndmask_b32 v7, v10, v7, vcc")
    A("v_cmp_gt_u32 vcc, 8, v3", "v_mov_b32 v10, 0xeeeeeeee", "v_mov_b32 v11, 0x44444444", "s_nop 1", "v_cndmask_b32 v8, v10, v11, vcc")

def st_flavor(A, txt):
    l = A.new("SF")
    A("s_cmp_eq_u32 s22, 0", f"s_cbranch_scc0 {l}", txt, f"s_branch {l}_e"); A.lab(l); A(txt + " sc1"); A.lab(l + "_e")

def arole(A):
    MF, XF, MH, BF, SA, AC, WT = 144, 112, 96, 80, 68, 172, 200
    def wreg(t, kb):
        f = t*5 + kb
        return ar(8*f, 8) if f < 32 else vr(232 + 8*(f-32), 8)
    stamp(A, 47)
    common_addr(A)
    w = "s20"
    A("s_mov_b32 s24, s21", f"s_mul_i32 s25, s24, {28*14*FR}", f"s_add_u32 s25, s25, {WA}", f"s_mul_i32 s26, s20, {6*14*FR}", "s_add_u32 s26, s26, s25",
      "s_add_u32 s27, s20, 24", f"s_mul_i32 s27, s27, {14*FR}", "s_add_u32 s27, s27, s25")
    A("s_mul_i32 s28, s20, 28672", "s_add_u32 s28, s28, 49152", "v_add_u32 v12, s28, v5")
    A("s_cmp_lt_u32 s20, 3", "s_cselect_b32 s56, s20, 0", "s_lshl_b32 s56, s56, 11", "s_add_u32 s56, s56, 8192",
      "s_mov_b32 s57, 10240", "s_mov_b32 s58, 12288", "s_cmp_eq_u32 s20, 1", "s_cselect_b32 s57, 0x2000, s57",
      "s_cmp_eq_u32 s20, 2", "s_cselect_b32 s57, 0x2000, s57", "s_cselect_b32 s58, 0x2800, s58")
    for t in range(7):
        A(f"s_add_u32 s29, s26, {t*14*FR}" if t < 6 else "s_mov_b32 s29, s27")
        for sl in range(7):
            A(f"s_add_u32 s30, s29, {sl*2048}" if sl < 4 else f"s_add_u32 s30, s29, s{52+sl}")
            for hf in range(2):
                off = f" offset:{hf*1024}" if hf else ""
                if sl < 5:
                    f = t*5 + sl; base = (256 + 8*f) if f < 32 else 232 + 8*(f-32)
                    A(f"buffer_load_dwordx4 {R(base+4*hf,4)}, v5, s[4:7], s30 offen{off}")
                else:
                    A(f"buffer_load_dwordx4 {vr(32+16*t+((sl-5)*2+hf)*4,4)}, v5, s[4:7], s30 offen{off}")
    A("s_waitcnt vmcnt(0)")
    for t in range(7):
        for i in range(4): A(f"ds_write_b128 v12, {vr(32+16*t+4*i,4)} offset:{t*4096+i*1024}")
    A("s_waitcnt lgkmcnt(0)")
    A("s_mul_i32 s28, s20, 6272", "s_add_u32 s28, s28, 8192")
    A("v_lshrrev_b32 v10, 2, v3", "v_mul_u32_u24 v10, 392, v10", "v_and_b32 v11, 3, v3", "v_lshl_add_u32 v10, v11, 5, v10", "v_lshl_add_u32 v10, v4, 3, v10",
      "v_add_u32 v13, s28, v10")
    A("s_and_b32 s29, s20, 1", "s_lshl_b32 s29, s29, 7", f"s_add_u32 s29, s29, {3*1568}", "v_add_u32 v14, s29, v13")
    A("v_mul_u32_u24 v10, 392, v4", "v_lshrrev_b32 v11, 2, v3", "v_lshl_add_u32 v10, v11, 5, v10", "v_and_b32 v11, 3, v3", "v_lshl_add_u32 v10, v11, 3, v10", "v_add_u32 v15, s28, v10")
    A("v_lshrrev_b32 v10, 1, v4", "v_lshlrev_b32 v10, 8, v10", "v_and_b32 v11, 7, v3", "v_lshl_add_u32 v10, v11, 4, v10", "v_and_b32 v11, 1, v4", "v_lshl_add_u32 v10, v11, 3, v10",
      "s_mul_i32 s29, s20, 1536", "v_add_u32 v16, s29, v10", "s_lshr_b32 s29, s20, 1", "s_add_u32 s29, s29, 12", "s_lshl_b32 s29, s29, 9", "v_add_u32 v17, s29, v10")
    A("s_mul_i32 s29, s20, 3456", "s_add_u32 s29, s29, 33792", "v_mul_u32_u24 v10, 288, v4", "v_lshl_add_u32 v10, v3, 4, v10", "v_add_u32 v18, s29, v10")
    A("v_lshrrev_b32 v22, 5, v1", "v_bfe_u32 v23, v1, 1, 4", "v_and_b32 v24, 1, v1", "v_min_u32 v25, 11, v23",
      "v_lshrrev_b32 v26, 2, v25", "v_and_b32 v27, 3, v25",
      "s_lshl_b32 s29, s20, 1", "v_add_u32 v28, s29, v22", "v_lshl_add_u32 v28, v24, 3, v28",
      "v_mul_u32_u24 v29, 288, v27", "v_lshl_add_u32 v29, v28, 4, v29", "v_mul_u32_u24 v30, 1152, v26", "v_add_u32 v29, v29, v30", "v_add_u32 v19, 33792, v29")
    A("s_and_b32 s29, s24, 1", "s_lshr_b32 s30, s24, 1", "s_lshl_b32 s30, s30, 10", "s_lshl_b32 s31, s29, 9", "s_add_u32 s30, s30, s31",
      "v_lshrrev_b32 v30, 1, v27", "v_lshl_add_u32 v30, v30, 4, v28", "v_lshlrev_b32 v30, 4, v30",
      "v_and_b32 v31, 1, v27", "v_lshl_add_u32 v30, v31, 3, v30",
      "v_lshl_add_u32 v31, v26, 2, v30", "v_add_u32 v31, s30, v31",
      "s_lshr_b32 s30, s24, 2", "s_lshl_b32 s30, s30, 10", "s_bfe_u32 s31, s24, 0x10001", "s_lshl_b32 s31, s31, 9", "s_add_u32 s30, s30, s31",
      "s_lshl_b32 s31, s29, 2", "s_add_u32 s30, s30, s31", "s_add_u32 s30, s30, 8192", "v_add_u32 v30, s30, v30",
      "v_cmp_eq_u32 vcc, 2, v26", "s_nop 1", "v_cndmask_b32 v20, v31, v30, vcc",
      "v_cmp_gt_u32 s[40:41], 12, v23", f"v_mov_b32 v30, {OOB}", "s_nop 1", "v_cndmask_b32 v20, v30, v20, s[40:41]",
      "v_cmp_eq_u32 s[42:43], 1, v24", "v_cmp_gt_u32 vcc, 10, v23", "v_mov_b32 v30, 0", "v_mov_b32 v31, 1.0", "s_nop 0", "v_cndmask_b32 v21, v30, v31, vcc")
    A("s_cmp_eq_u32 s20, 0", "s_cselect_b32 s29, 4, 6", f"s_mov_b32 s44, {PB}", f"s_mov_b32 s45, {PSZ}", f"s_cselect_b32 s44, {MB}, s44", f"s_cselect_b32 s45, {MSZ}, s45",
      "s_mul_i32 s30, s29, s24", "v_add_u32 v22, s30, v1", "v_lshlrev_b32 v22, 7, v22", "v_cmp_gt_u32 vcc, s29, v1", f"v_mov_b32 v30, {OOB}", "s_nop 1", "v_cndmask_b32 v22, v30, v22, vcc",
      "s_cmp_lt_u32 s20, 2", "s_cbranch_scc1 A_WOK2", f"v_mov_b32 v22, {OOB}", "s_cmp_eq_u32 s20, 2", "s_cbranch_scc0 A_WOK",
      f"s_mov_b32 s44, {CF}", "s_mov_b32 s45, 128", "v_cmp_eq_u32 vcc, 0, v1", "v_mov_b32 v30, 0", "s_nop 1", "v_cndmask_b32 v22, v22, v30, vcc")
    A("s_branch A_WOK2")
    A.lab("A_WOK")
    A("s_cmp_eq_u32 s20, 3", "s_cbranch_scc0 A_WOK2", f"s_mov_b32 s44, {XN}", "s_mov_b32 s45, 28672", "s_mul_i32 s30, s24, 14", "v_add_u32 v22, s30, v1",
      "v_lshlrev_b32 v22, 7, v22", "v_cmp_gt_u32 vcc, 14, v1", f"v_mov_b32 v30, {OOB}", "s_nop 1", "v_cndmask_b32 v22, v30, v22, vcc")
    A.lab("A_WOK2")
    for i in range(4): A(f"v_mov_b32 v{32+i}, 0")
    for i in range(7): A(f"ds_write_b128 v9, v[32:35] offset:{8192+i*4096}")
    A("s_mul_i32 s46, s20, 3072", f"s_add_u32 s46, s46, {XN}", "s_lshr_b32 s47, s20, 1", "s_lshl_b32 s47, s47, 10", f"s_add_u32 s47, s47, {XN+12*1024}")
    def xload():
        for jt in range(2):
            A(f"s_add_u32 s29, s46, {jt*14336}", f"s_add_u32 s30, s47, {jt*14336}")
            for j in range(3): A(f"buffer_load_dwordx4 {vr(XF+(jt*4+j)*4,4)}, v5, s[4:7], s29 offen offset:{j*1024}")
            A(f"buffer_load_dwordx4 {vr(XF+(jt*4+3)*4,4)}, v5, s[4:7], s30 offen")
        A("s_add_u32 s46, s46, 28672", "s_add_u32 s47, s47, 28672")
    xload()
    def xl(j):
        if EXP & 256: return
        for jt in range(2):
            if j < 3: A(f"s_add_u32 s29, s46, {jt*14336}", f"buffer_load_dwordx4 {vr(XF+(jt*4+j)*4,4)}, v5, s[4:7], s29 offen offset:{j*1024}")
            else: A(f"s_add_u32 s30, s47, {jt*14336}", f"buffer_load_dwordx4 {vr(XF+(jt*4+3)*4,4)}, v5, s[4:7], s30 offen")
    A(f"s_mov_b32 s48, {MB}", f"s_mov_b32 s49, {PB}", "s_mov_b32 s50, 0", f"s_mul_i32 s51, s45, 2", "s_add_u32 s44, s44, s51", f"s_mov_b32 s52, {CF}", "s_mov_b32 s53, 0x3fb8aa3b")
    A("s_cmp_eq_u32 s20, 3", "s_cbranch_scc0 A_V7", "v_add_u32 v7, 4096, v5")
    A.lab("A_V7")
    A("s_waitcnt lgkmcnt(0)", "s_barrier")
    stamp(A, 44)
    tick_init(A)
    if True:
        for W in range(1, 4): A(f"s_cmp_eq_u32 s20, {W}", f"s_cbranch_scc1 A_LOOP{W}")
    for W in range(4):
        A.lab(f"A_LOOP{W}")
        for i in range(28): A(f"v_mov_b32 v{AC+i}, 0")
        for i in range(12): A(f"v_mov_b32 v{SA+i}, 0")
        for i in range(4): A(f"ds_read_b128 {vr(WT+4*i,4)}, v12 offset:{i*1024}")
        tick(A, 0)
        if not (EXP & 8):
            A("s_cmp_eq_u32 s50, 0", "s_cbranch_scc1 A_GO", "v_mov_b32 v11, 0")
            A.lab("A_GATE")
            A("buffer_load_dword v10, v11, s[4:7], s52 offen sc1", "s_waitcnt vmcnt(0)", "v_cmp_eq_u32 vcc, 0, v10", "s_cbranch_vccz A_GO1",
              "s_sub_u32 s23, s23, 1", "s_cmp_gt_i32 s23, 0", "s_cbranch_scc1 A_GATE")
            A.lab("A_GO1"); A("s_add_u32 s52, s52, 128"); A.lab("A_GO")
        own = {W: 52, (4+W if W < 3 else 4): 56}
        perm = [[0,1,2,3,4,5,6], [0,1,2,3,5,4,6], [0,1,2,3,6,4,5], [0,1,2,3,4,5,6]][W]
        def sm0(t, kb):
            sl = perm.index(kb)
            b = wreg(t, sl) if sl < 5 else vr(WT+(t % 2)*16+(sl-5)*8, 8)
            A(f"v_smfmac_f32_16x16x64_bf16 {vr(AC+4*t,4)}, {vr(own.get(kb, MF+4*kb),4)}, {b}, v8")
        early = [(t, kb) for kb in own for t in range(7)]
        def pre():
            for t, kb in early[:5]: sm0(t, kb)
        poll_m(A, f"A_POLL{W}", "v6", "v7", "s48", 52, pre)
        tick(A, 1)
        L = LG(A)
        for kb in range(7):
            if kb not in own: L.op(f"ds_read_b128 {vr(MF+4*kb,4)}, v5 offset:{kb*1024}", f"m{kb}")
        def wl(t):
            if EXP & 1: return
            for i in range(4): L.op(f"ds_read_b128 {vr(WT+(t%2)*16+4*i,4)}, v12 offset:{t*4096+i*1024}", f"w{t}")
        if not (EXP & 512): A("buffer_load_dword v23, v22, s[4:7], s44 offen sc1", "s_add_u32 s44, s44, s45")
        def memhh(j):
            if EXP & 2: return
            a = "v16" if j < 3 else "v17"; o = j*512 if j < 3 else 0
            for r, d in enumerate((0, 128, 4, 132)): L.op(f"ds_read_b32 v{MH+4*j+r}, {a} offset:{o+d}", f"h{j}")
        def post(t):
            if EXP & 2: return
            d = AC + 4*t; c = 60 + (t % 2)*2
            A(f"v_cvt_pk_bf16_f32 v{c}, v{d}, v{d+1}", f"v_cvt_pk_bf16_f32 v{c+1}, v{d+2}, v{d+3}")
            if t < 6: L.op(f"ds_write_b64 v13, {vr(c,2)} offset:{(t//2)*1568+(t%2)*128}")
            else: L.op(f"ds_write_b64 v14, {vr(c,2)}")
        def tr(j):
            if EXP & 2: return
            L.op(f"ds_read_b64_tr_b16 {vr(BF+4*j,2)}, v15 offset:{j*1568}", f"b{j}"); L.op(f"ds_read_b64_tr_b16 {vr(BF+4*j+2,2)}, v15 offset:{j*1568+128}", f"b{j}")
        def sc(j):
            if EXP & 2: return
            L.wait(f"b{j}")
            for jt in range(3):
                a = vr(XF+(jt*4+j)*4, 4) if jt < 2 else vr(MH+4*j, 4)
                A(f"v_mfma_f32_16x16x32_bf16 {vr(SA+4*jt,4)}, {a}, {vr(BF+4*j,4)}, {vr(SA+4*jt,4)}")
            if j < 3: xl(j)
        for t, kb in early[5:]: sm0(t, kb)
        def sm(t, sl):
            if perm[sl] not in own: sm0(t, perm[sl])
        for t in range(7):
            if t == 0:
                for sl in range(5): L.wait(f"m{perm[sl]}"); sm(0, sl)
                wl(1); memhh(0); L.wait(f"m{perm[5]}"); L.wait(f"m{perm[6]}"); sm(0, 5); sm(0, 6)
                continue
            sm(t, 0); sm(t, 1)
            if t < 6: wl(t+1)
            if t in (1, 2, 3): memhh(t)
            sm(t, 2); sm(t, 3)
            A("s_nop 1")
            post(t-1)
            if t % 2 == 0: tr(t//2 - 1)
            sm(t, 4)
            L.wait(f"w{t}")
            sm(t, 5); sm(t, 6)
            if t in (3, 5): sc((t-3)//2)
        sc(2)
        A("s_nop 3")
        post(6); tr(3); sc(3)
        A("s_nop 7")
        for jt in range(3): L.op(f"ds_write_b128 v18, {vr(SA+4*jt,4)} offset:{jt*1152}")
        xl(3)
        A("s_add_u32 s46, s46, 28672", "s_add_u32 s47, s47, 28672")
        L.all(); tick(A, 2); A("s_barrier"); tick(A, 3)
        for wv in range(4): A(f"ds_read_b128 {vr(32+4*wv,4)}, v19 offset:{wv*3456}")
        A("s_waitcnt lgkmcnt(2)")
        A("v_pk_add_f32 v[32:33], v[32:33], v[36:37]", "v_pk_add_f32 v[34:35], v[34:35], v[38:39]", "s_waitcnt lgkmcnt(0)",
          "v_pk_add_f32 v[40:41], v[40:41], v[44:45]", "v_pk_add_f32 v[42:43], v[42:43], v[46:47]",
          "v_pk_add_f32 v[32:33], v[32:33], v[40:41]", "v_pk_add_f32 v[34:35], v[34:35], v[42:43]", "s_nop 1")
        for r in range(4): A(f"v_add_f32_dpp v{36+r}, v{32+r}, v{32+r} quad_perm:[1,0,3,2] row_mask:0xf bank_mask:0xf")
        def allred(op, x):
            for rot in (8, 4, 2): A("s_nop 1", f"{op}_dpp v{x}, v{x}, v{x} row_ror:{rot} row_mask:0xf bank_mask:0xf")
            A(f"v_mov_b32 v41, v{x}", "s_nop 1", f"v_permlane16_swap_b32 v41, v{x}", "s_nop 1", f"{op} v{x}, v41, v{x}")
        A("v_max3_f32 v40, v36, v37, v38", "v_max_f32 v40, v40, v39"); allred("v_max_f32", 40)
        A("v_mul_f32 v40, 0xbfb8aa3b, v40")
        for r in range(4): A(f"v_fma_f32 v{36+r}, v{36+r}, s53, v40")
        for r in range(4): A(f"v_exp_f32 v{36+r}, v{36+r}")
        A("s_nop 0", "v_add_f32 v40, v36, v37", "v_add_f32 v42, v38, v39", "v_add_f32 v40, v40, v42", "v_mul_f32 v40, v40, v21"); allred("v_add_f32", 40)
        A("v_rcp_f32 v40, v40", "s_nop 0")
        for r in range(4): A(f"v_mul_f32 v{36+r}, v{36+r}, v40")
        A("v_cvt_pk_bf16_f32 v36, v36, v37", "v_cvt_pk_bf16_f32 v37, v38, v39", "v_cndmask_b32 v36, v36, v37, s[42:43]", "v_min_u32 v36, -2, v36")
        st_flavor(A, "buffer_store_dword v36, v20, s[4:7], s49 offen")
        tick(A, 4)
        A(f"s_add_u32 s48, s48, {MSZ}", f"s_add_u32 s49, s49, {PSZ}", "s_add_u32 s50, s50, 1", "s_cmp_lt_u32 s50, 63", f"s_cbranch_scc1 A_LOOP{W}", "s_branch A_END")
    A.lab("A_END")
    A("s_cmp_eq_u32 s21, 3", "s_cbranch_scc0 A_ND", "s_cmp_eq_u32 s20, 0", "s_cbranch_scc0 A_ND"); tick_dump(A, 16); A.lab("A_ND")

def vrole(A):
    MF, XA, XBf, GF, AC, WT, WV_ = 32, 60, 92, 124, 140, 152, 168
    def wreg(i, kb):
        f = i*5 + kb
        return ar(8*f, 8) if f < 32 else vr(WV_ + 8*(f-32), 8)
    common_addr(A)
    A("s_sub_u32 s24, s21, 16", "s_and_b32 s25, s20, 1", "s_lshr_b32 s26, s20, 1")
    A("s_lshl_b32 s27, s24, 1")
    A("s_mul_i32 s28, s20, 112", "s_add_u32 s28, s28, s27", f"s_mul_i32 s28, s28, {14*FR}", f"s_add_u32 s28, s28, {WV}")
    A("s_lshl_b32 s29, s20, 15", "s_add_u32 s29, s29, 16384", "v_add_u32 v12, s29, v5")
    for i in range(8):
        A(f"s_add_u32 s29, s28, {((i&3)*28+(i>>2))*14*FR}")
        for kb in range(7):
            for hf in range(2):
                ks = 2*kb + hf
                if ks % 4 == 0 and ks: A("s_add_u32 s29, s29, 4096")
                off = f" offset:{(ks%4)*1024}" if ks % 4 else ""
                if kb < 5:
                    f = i*5 + kb; base = (256 + 8*f) if f < 32 else WV_ + 8*(f-32)
                    A(f"buffer_load_dwordx4 {R(base+4*hf,4)}, v5, s[4:7], s29 offen{off}")
                else:
                    A(f"buffer_load_dwordx4 {vr(32+16*i+((kb-5)*2+hf)*4,4)}, v5, s[4:7], s29 offen{off}")
    A("s_waitcnt vmcnt(0)")
    for i in range(8):
        for q in range(4): A(f"ds_write_b128 v12, {vr(32+16*i+4*q,4)} offset:{i*4096+q*1024}")
    A("s_waitcnt lgkmcnt(0)")
    A("s_lshl_b32 s29, s20, 11", "s_add_u32 s29, s29, 8192", "v_lshlrev_b32 v10, 8, v4", "v_lshl_add_u32 v10, v3, 2, v10", "v_add_u32 v13, s29, v10")
    A("v_lshrrev_b32 v10, 2, v1", "v_and_b32 v11, 7, v10", "v_lshlrev_b32 v11, 6, v11", "v_and_b32 v14, 3, v1", "v_lshl_add_u32 v11, v14, 4, v11",
      "v_lshrrev_b32 v10, 3, v10", "v_lshl_add_u32 v11, v10, 3, v11", "s_lshl_b32 s29, s25, 10", "s_add_u32 s29, s29, 8192", "v_add_u32 v14, s29, v11")
    for r in range(4):
        A(f"v_add_u32 v10, {r}, v4", "v_and_b32 v10, 3, v10", f"v_subrev_u32 v10, {r}, v10" if r else "v_mov_b32 v10, v10", "v_lshlrev_b32 v10, 6, v10", f"v_add_u32 v{248+r}, v13, v10",
          f"v_add_u32 v{248+r}, {r*64}, v{248+r}")
    A("v_lshrrev_b32 v10, 2, v1", "v_and_b32 v10, 7, v10", "v_lshrrev_b32 v11, 2, v10", "v_and_b32 v252, 3, v10",
      "v_add_u32 v253, v252, v11", "v_and_b32 v253, 3, v253", "v_sub_u32 v253, v253, v252", "v_lshlrev_b32 v253, 6, v253",
      "v_add_u32 v254, v252, v11", "v_add_u32 v254, 2, v254", "v_and_b32 v254, 3, v254", "v_sub_u32 v254, v254, v252", "v_lshlrev_b32 v254, 6, v254",
      "v_add_u32 v252, v14, v254", "v_add_u32 v252, 512, v252", "v_add_u32 v14, v14, v253")
    A("s_lshl_b32 s29, s24, 9", "s_lshl_b32 s30, s25, 8", "s_add_u32 s29, s29, s30", "v_lshlrev_b32 v15, 2, v1", "v_add_u32 v15, s29, v15")
    A("v_lshlrev_b32 v16, 4, v1", "v_mov_b32 v17, 0", "v_mov_b32 v18, 1")
    A("s_mul_i32 s46, s20, 1792", "s_lshl_b32 s29, s27, 4", "s_add_u32 s46, s46, s29", "s_lshl_b32 s46, s46, 6", f"s_add_u32 s46, s46, {XVO}")
    A("s_lshl_b32 s47, s27, 3", "s_lshl_b32 s29, s20, 1", "s_add_u32 s47, s47, s29", "s_lshl_b32 s47, s47, 10", f"s_add_u32 s47, s47, {GB}")
    A("s_lshl_b32 s49, s20, 11", f"s_add_u32 s49, s49, {PB}", "s_lshl_b32 s51, s20, 10", f"s_add_u32 s51, s51, {PB+8192}", f"s_mov_b32 s55, {CF}")
    A(f"s_mov_b32 s48, {MB}", "s_mov_b32 s50, 0", "s_mov_b32 s52, 0")
    def xvo_ready(seg_s, tag):
        A(f"s_cmp_lt_u32 {seg_s}, s52", f"s_cbranch_scc1 {tag}_ok")
        A.lab(tag)
        A(f"s_lshl_b32 s29, {seg_s}, 7", f"s_add_u32 s29, s29, {CX}", f"s_mov_b32 s30, {CX+63*128}",
          "buffer_load_dword v10, v17, s[4:7], s29 offen sc1", "buffer_load_dword v11, v17, s[4:7], s30 offen sc1", "s_waitcnt vmcnt(0)",
          "v_readfirstlane_b32 s29, v10", "v_readfirstlane_b32 s30, v11", "s_cmp_ge_u32 s30, 112", "s_cselect_b32 s52, 64, s52",
          "s_cmp_ge_u32 s29, 112", f"s_cbranch_scc1 {tag}_ok", "s_sub_u32 s23, s23, 1", "s_cmp_gt_i32 s23, 0", f"s_cbranch_scc1 {tag}")
        A.lab(tag + "_ok")
    def xvo_load(dst):
        for i in range(8):
            A(f"s_add_u32 s29, s46, {(i&3)*448*64+(i>>2)*1024}", f"buffer_load_dwordx4 {vr(dst+4*i,4)}, v16, s[4:7], s29 offen sc1")
        A(f"s_add_u32 s46, s46, {SEG_XVO}")
    stamp(A, 41)
    xvo_ready("s50", "V_X0"); xvo_load(XA)
    stamp(A, 42)
    tick_init(A)
    A.lab("V_LOOP")
    poll_m(A, "V_POLL", "v6", "v7", "s48", 20)
    tick(A, 0)
    A("s_cmp_eq_u32 s21, 16", "s_cbranch_scc0 V_NOM2", f"s_add_u32 s29, s48, {MB2-MB}",
      "buffer_store_dwordx4 v[20:23], v6, s[4:7], s29 offen sc1", "buffer_store_dwordx4 v[24:27], v7, s[4:7], s29 offen sc1")
    A.lab("V_NOM2")
    L = LG(A)
    for kb in range(7): L.op(f"ds_read_b128 {vr(MF+4*kb,4)}, v5 offset:{kb*1024}", f"m{kb}")
    WB = (WT, 232)
    def wl(i):
        if EXP & 128: return
        for q in range(4): L.op(f"ds_read_b128 {vr(WB[i%2]+4*q,4)}, v12 offset:{i*4096+q*1024}", f"w{i}")
    wl(0)
    def house():
        sk = A.new("VG")
        A("s_cmp_eq_u32 s50, 0", f"s_cbranch_scc1 {sk}", "s_sub_u32 s29, s50, 1", "s_lshl_b32 s29, s29, 7", f"s_add_u32 s29, s29, {CG}",
          "s_mov_b64 exec, 1", "buffer_atomic_add v18, v17, s[4:7], s29 offen", "s_mov_b64 exec, -1")
        A.lab(sk)
        A("s_add_u32 s53, s50, 1", "s_cmp_lt_u32 s53, 63", "s_cbranch_scc0 V_NOX")
        xvo_ready("s53", "V_X1")
        A.lab("V_NOX")
        A("s_cmp_lt_u32 s53, 63", f"s_cselect_b32 s56, s46, {XN}")
    def gcvt(i):
        d = AC + 4*(i % 3); o = GF + 2*i
        A(f"v_cvt_pk_bf16_f32 v{o}, v{d}, v{d+1}", f"v_cvt_pk_bf16_f32 v{o+1}, v{d+2}, v{d+3}")
        if i % 2 == 1 and i//2 < DEFP: gst(i//2)
    def gst(p):
        if True:
            if p >= 2: A("s_add_u32 s54, s47, 8192")
            A(f"buffer_store_dwordx4 {vr(GF+4*p,4)}, v5, s[4:7], {'s47' if p < 2 else 's54'} offen offset:{(p&1)*1024} sc1")
    for r in range(4): A(f"v_mov_b32 v{AC+r}, 0")
    for i in range(8):
        d = vr(AC+4*(i % 3), 4)
        if i < 7: wl(i+1)
        for kb in range(5):
            if i == 0: L.wait(f"m{kb}")
            A(f"v_smfmac_f32_16x16x64_bf16 {d}, {vr(MF+4*kb,4)}, {wreg(i,kb)}, v8")
            if kb == 0 and i < 7:
                for r in range(4): A(f"v_mov_b32 v{AC+4*((i+1)%3)+r}, 0")
            if kb == 3 and i > 0 and not (EXP & 64): gcvt(i-1)
        if i == 0: L.wait("m6")
        L.wait(f"w{i}")
        for kb in (5, 6): A(f"v_smfmac_f32_16x16x64_bf16 {d}, {vr(MF+4*kb,4)}, {vr(WB[i%2]+(kb-5)*8,8)}, v8")
        if i == 0: house()
        A(f"s_add_u32 s29, s56, {(i&3)*448*64+(i>>2)*1024}", f"buffer_load_dwordx4 {vr(XBf+4*i,4)}, v16, s[4:7], s29 offen sc1")
        if i == 7: A(f"s_add_u32 s46, s46, {SEG_XVO}")
    A("s_nop 7", "s_nop 1"); gcvt(7)
    A("s_cmp_eq_u32 s50, 63", "s_cbranch_scc1 V_FIN")
    for r in range(8): A(f"v_mov_b32 v{AC+r}, 0")
    tick(A, 1)
    def pissue(r):
        for u in range(2): A(f"buffer_load_dwordx4 {vr(r+4*u,4)}, v5, s[4:7], s49 offen offset:{u*1024} sc1")
        A(f"buffer_load_dwordx4 {vr(r+8,4)}, v5, s[4:7], s51 offen sc1")
    def pcheck(r, ok):
        A("s_waitcnt vmcnt(0)", f"v_max3_u32 v10, v{r}, v{r+1}, v{r+2}", f"v_max3_u32 v11, v{r+3}, v{r+4}, v{r+5}",
          f"v_max3_u32 v10, v10, v{r+6}, v{r+7}", f"v_max3_u32 v11, v11, v{r+8}, v{r+9}", f"v_max3_u32 v10, v10, v{r+10}, v{r+11}", "v_max_u32 v10, v10, v11",
          "v_cmp_eq_u32 vcc, -1, v10", f"s_cbranch_vccz {ok}")
    def pv(r):
        for u in range(3):
            for ct in range(2):
                b = vr(XA+16*ct+8*u, 8) if u < 2 else vr(GF+8*ct, 8)
                A(f"v_smfmac_f32_16x16x64_bf16 {vr(AC+4*ct,4)}, {vr(r+4*u,4)}, {b}, v8")
    A.lab("V_PP")
    pissue(MF); pcheck(MF, "V_PP0")
    A("s_sub_u32 s23, s23, 1", "s_cmp_gt_i32 s23, 0", "s_cbranch_scc1 V_PP")
    A.lab("V_PP0"); pv(MF)
    A.lab("V_PPE")
    tick(A, 2)
    A("s_cmp_eq_u32 s21, 16", "s_cbranch_scc0 V_NOF", "s_cmp_eq_u32 s20, 2", "s_cbranch_scc0 V_NOF")
    st_flavor(A, "buffer_store_dword v18, v17, s[4:7], s55 offen")
    A.lab("V_NOF")
    A("s_add_u32 s55, s55, 128", "s_nop 5")
    for ct in range(2):
        for r in range(4): A(f"ds_write_b32 v{248+r}, v{AC+4*ct+r} offset:{ct*1024}")
    A("s_waitcnt lgkmcnt(0)"); tick(A, 3); A("s_barrier")
    A(f"s_add_u32 s48, s48, {MSZ}", "s_cmp_lt_u32 s20, 2", "s_cbranch_scc0 V_NOPUB")
    for k in range(8): A(f"ds_read_b64 {vr(WT+2*k,2)}, {'v252' if k % 2 else 'v14'} offset:{(k//2)*2048}")
    for k in range(4): A(f"s_waitcnt lgkmcnt({6-2*k})", f"v_pk_add_f32 {vr(WT+4*k,2)}, {vr(WT+4*k,2)}, {vr(WT+4*k+2,2)}")
    A(f"v_pk_add_f32 {vr(WT,2)}, {vr(WT,2)}, {vr(WT+4,2)}", f"v_pk_add_f32 {vr(WT+8,2)}, {vr(WT+8,2)}, {vr(WT+12,2)}",
      f"v_pk_add_f32 {vr(WT,2)}, {vr(WT,2)}, {vr(WT+8,2)}", f"v_cvt_pk_bf16_f32 v20, v{WT}, v{WT+1}", "v_min_u32 v20, -2, v20")
    st_flavor(A, "buffer_store_dword v20, v15, s[4:7], s48 offen")
    A.lab("V_NOPUB")
    for p in range(DEFP, 4): gst(p)
    A(f"s_add_u32 s47, s47, {SEG_G}")
    tick(A, 4)
    for i in range(32): A(f"v_mov_b32 v{XA+i}, v{XBf+i}")
    A(f"s_add_u32 s49, s49, {PSZ}", f"s_add_u32 s51, s51, {PSZ}", "s_add_u32 s50, s50, 1", "s_branch V_LOOP")
    A.lab("V_FIN")
    A("s_nop 1")
    for p in range(DEFP, 4): gst(p)
    stamp(A, 43)
    A("s_cmp_eq_u32 s21, 19", "s_cbranch_scc0 V_ND", "s_cmp_eq_u32 s20, 0", "s_cbranch_scc0 V_ND"); tick_dump(A, 24); A.lab("V_ND")
    A("s_waitcnt vmcnt(0)", f"s_mov_b32 s29, {CG+63*128}", "s_mov_b64 exec, 1", "buffer_atomic_add v18, v17, s[4:7], s29 offen", "s_mov_b64 exec, -1")
```

```python
NAME = "gated_mix__ssm_conv_s5__memory_aug_recurrent_mem_tr__prompt"
KA = dict(x=0, lre=8, lim=16, bre=24, bim=32, cre=40, cim=48, logdt=56, dskip=64, mem0=80,
          wq=88, wk=96, wv=104, wo=112, gatew=128, out=136, dbg=144, ws=152)
FR = 1024
WA = 0
WV = WA + 16*28*14*FR
XN = WV + 16*28*14*FR
XVO = XN + 64*28*FR
SEG_XVO = 16*448*64
TT = XVO + 64*SEG_XVO
SEG_T = 16*28*FR
MB = TT + 64*SEG_T
MSZ = 7168
MB2 = MB + 64*MSZ
PB = MB2 + 64*MSZ
PSZ = 12288
GB = PB + 64*PSZ
SEG_G = 28*8*FR
PT = GB + 64*SEG_G
SEG_PT = 2*24*FR
EB = PT + 64*SEG_PT
AB = EB + 64*448*8
SEG_A = 28*2*FR
GT = AB + 64*SEG_A
CNT = GT + 2048*4
CX, CT, CG, CP, CE, CA, CF = [CNT + i*64*128 for i in range(7)]
WS_END = CNT + 7*64*128
SENT = 0xFFFFFFFF

class Asm:
    def __init__(s): s.l = []; s.n = 0
    def __call__(s, *a):
        for x in a:
            for ln in x.split("\n"):
                if ln.strip(): s.l.append("    " + ln.strip())
    def lab(s, x): s.l.append(x + ":")
    def new(s, p="L"):
        s.n += 1; return f"{p}_{s.n}"
    def txt(s): return "\n".join(s.l) + "\n"

def vr(b, n=1): return f"v{b}" if n == 1 else f"v[{b}:{b+n-1}]"
def ar(b, n=1): return f"a{b}" if n == 1 else f"a[{b}:{b+n-1}]"
def sr(b, n=1): return f"s{b}" if n == 1 else f"s[{b}:{b+n-1}]"
def R(b, n=1):
    return vr(b, n) if b < 256 else ar(b-256, n)

def srd(A, d, karg, size, tmp=None):
    A(f"s_load_dwordx2 s[{d}:{d+1}], s[0:1], {karg}")
    A("s_waitcnt lgkmcnt(0)")
    A(f"s_and_b32 s{d+1}, s{d+1}, 0xffff", f"s_mov_b32 s{d+2}, {size}", f"s_mov_b32 s{d+3}, 0x00020000")

def kdesc(name, vgpr, accum, sgpr=102):
    return f"""
.p2align 6
.amdhsa_kernel {name}
  .amdhsa_next_free_vgpr {vgpr}
  .amdhsa_next_free_sgpr {sgpr}
  .amdhsa_accum_offset {accum}
  .amdhsa_group_segment_fixed_size 0
  .amdhsa_kernarg_size 160
  .amdhsa_user_sgpr_count 2
  .amdhsa_user_sgpr_kernarg_segment_ptr 1
  .amdhsa_system_sgpr_workgroup_id_x 1
.end_amdhsa_kernel
"""
def khead(name):
    return f".globl {name}\n.p2align 8\n.type {name},@function\n{name}:\n"

import os
TIMING = int(os.environ.get('TIMING', 0))
def stamp(A, slot, cond_wave0=True):
    if not TIMING: return
    A("s_memrealtime s[60:61]", "s_waitcnt lgkmcnt(0)", "v_mov_b32 v2, s60", "s_mov_b64 s[62:63], exec", "s_mov_b64 exec, 1",
      "s_nop 4", f"v_mov_b32 v10, 0", f"buffer_store_dword v2, v10, s[8:11], 0 offen offset:{slot*4}", "s_mov_b64 exec, s[62:63]")

def tick(A, k):
    if TIMING < 2: return
    if TIMING == 3:
        A("s_memrealtime s[64:65]", "s_waitcnt lgkmcnt(0)", f"s_add_u32 s{70+k}, s{70+k}, s64"); return
    A("s_memtime s[64:65]", "s_waitcnt lgkmcnt(0)", "s_sub_u32 s66, s64, s68", f"s_add_u32 s{70+k}, s{70+k}, s66", "s_mov_b32 s68, s64")
def tick_init(A):
    if TIMING < 2: return
    A("s_memtime s[64:65]", "s_waitcnt lgkmcnt(0)", "s_mov_b32 s68, s64")
    for k in range(8): A(f"s_mov_b32 s{70+k}, 0")
def tick_dump(A, slot):
    if TIMING < 2: return
    A("s_mov_b64 s[62:63], exec", "s_mov_b64 exec, 1", "v_mov_b32 v10, 0")
    for k in range(8): A(f"v_mov_b32 v2, s{70+k}", f"buffer_store_dword v2, v10, s[8:11], 0 offen offset:{(slot+k)*4}", "s_nop 1")
    A("s_mov_b64 exec, s[62:63]")
```

```python
from common import *
def gen_k1(name):
    A = Asm()
    A("s_cmp_ge_u32 s2, 256", "s_cbranch_scc1 K1_END")
    srd(A, 4, KA['ws'], WS_END)
    A("v_and_b32 v1, 63, v0", "v_lshrrev_b32 v2, 6, v0", "s_nop 1", "v_readfirstlane_b32 s20, v2")
    A("v_and_b32 v3, 15, v1", "v_lshrrev_b32 v4, 4, v1")
    A("s_cmp_ge_u32 s2, 224", "s_cbranch_scc1 K1_MISC")
    A("s_cmp_ge_u32 s2, 112", "s_cselect_b32 s21, 1, 0")
    A("s_mul_i32 s16, s21, 112", "s_sub_u32 s16, s2, s16")
    A("s_mul_i32 s17, s16, 9363", "s_lshr_b32 s17, s17, 16")
    A("s_mul_i32 s18, s17, 7", "s_sub_u32 s18, s16, s18")
    A("v_lshrrev_b32 v5, 2, v3", "v_lshlrev_b32 v5, 3, v5", "v_and_b32 v6, 3, v3", "v_add_u32 v5, v5, v6",
      "v_lshlrev_b32 v5, 13, v5", "v_lshl_add_u32 v5, v4, 4, v5")
    def aloads(tag):
        for it in range(4):
            if it == 3: A("s_cmp_ge_u32 s20, 2", f"s_cbranch_scc1 {tag}")
            A(f"s_add_u32 s26, s20, {4*it}", "s_lshl_b32 s22, s26, 18", "s_lshl_b32 s23, s17, 9", "s_add_u32 s22, s22, s23")
            for o in range(2):
                for es in range(8):
                    A(f"buffer_load_dwordx4 {ar(64*it+(o*8+es)*4,4)}, v5, s[8:11], s22 offen offset:{es*64}")
                A(f"s_add_u32 s22, s22, {4*8192}")
        A.lab(tag)
    A("s_cmp_eq_u32 s21, 0", "s_cbranch_scc0 K1_VO")
    srd(A, 8, KA['wq'], 448*8192)
    srd(A, 12, KA['wk'], 448*8192)
    for t in range(4):
        A(f"s_lshl_b32 s22, s18, 19", f"s_add_u32 s22, s22, {(32*(t//2)+4*(t%2))*8192}", "s_lshl_b32 s23, s17, 9", "s_add_u32 s22, s22, s23")
        for es in range(8):
            A(f"buffer_load_dwordx4 {vr(64+(t*8+es)*4,4)}, v5, s[12:15], s22 offen offset:{es*64}")
    A("s_mov_b32 s24, 0x3d800000", f"s_mov_b32 s25, {WA}", "s_branch K1_GEMM")
    A.lab("K1_VO")
    srd(A, 8, KA['wv'], 448*8192)
    srd(A, 12, KA['wo'], 16*256*896)
    A("v_lshrrev_b32 v6, 3, v0", "v_and_b32 v7, 7, v0", "s_mov_b32 s22, 896", "v_mul_lo_u32 v8, v6, s22",
      "v_lshl_add_u32 v8, v7, 4, v8", "v_lshlrev_b32 v9, 7, v6", "v_lshl_add_u32 v9, v7, 4, v9")
    A("s_mul_i32 s22, s17, 229376", "s_lshl_b32 s23, s18, 7", "s_add_u32 s22, s22, s23")
    for i in range(8):
        A(f"buffer_load_dwordx4 {vr(192+4*i,4)}, v8, s[12:15], s22 offen", f"s_add_u32 s22, s22, {32*896}")
    for i in range(8):
        A(f"s_waitcnt vmcnt({7-i})", f"ds_write_b128 v9, {vr(192+4*i,4)} offset:{i*4096}")
    A("s_waitcnt lgkmcnt(0)", "s_barrier")
    A("v_lshrrev_b32 v6, 2, v3", "v_lshl_add_u32 v6, v4, 3, v6", "v_lshlrev_b32 v6, 7, v6", "v_and_b32 v7, 3, v3", "v_lshl_add_u32 v6, v7, 3, v6")
    for t in range(4):
        for es in range(8):
            b = 64+(t*8+es)*4
            A(f"ds_read_b64_tr_b16 {vr(b,2)}, v6 offset:{es*4096+t*32}", f"ds_read_b64_tr_b16 {vr(b+2,2)}, v6 offset:{es*4096+t*32+512}")
        A("s_waitcnt lgkmcnt(0)")
    A("s_mov_b32 s24, 1.0", f"s_mov_b32 s25, {WV}")
    A.lab("K1_GEMM")
    A("s_mul_i32 s22, s17, 28", "s_lshl_b32 s23, s18, 2", "s_add_u32 s22, s22, s23", f"s_mul_i32 s22, s22, {14*1024}", "s_add_u32 s25, s25, s22")
    A("v_lshlrev_b32 v7, 4, v1")
    A("s_mov_b32 s26, s20")
    A.lab("K1_KS")
    A("s_lshl_b32 s22, s26, 18", "s_lshl_b32 s23, s17, 9", "s_add_u32 s22, s22, s23")
    for o in range(2):
        for es in range(8):
            A(f"buffer_load_dwordx4 {vr(192+(o*8+es)*4,4)}, v5, s[8:11], s22 offen offset:{es*64}")
        A(f"s_add_u32 s22, s22, {4*8192}")
    for i in range(32): A(f"v_mov_b32 v{16+i}, 0")
    A("s_waitcnt vmcnt(0)")
    for es in range(8):
        for o in range(2):
            for t in range(4):
                d = 16+(o*4+t)*4
                A(f"v_mfma_f32_16x16x32_bf16 {vr(d,4)}, {vr(192+(o*8+es)*4,4)}, {vr(64+(t*8+es)*4,4)}, {vr(d,4)}")
    A("s_nop 7", "s_nop 3")
    A("s_lshl_b32 s22, s26, 10", "s_add_u32 s22, s22, s25")
    for t in range(4):
        for o in range(2):
            for r in range(4): A(f"v_mul_f32 v{16+(o*4+t)*4+r}, s24, v{16+(o*4+t)*4+r}")
        for o in range(2):
            d = 16+(o*4+t)*4
            A(f"v_cvt_pk_bf16_f32 v{48+4*t+2*o}, v{d}, v{d+1}", f"v_cvt_pk_bf16_f32 v{48+4*t+2*o+1}, v{d+2}, v{d+3}")
        A(f"buffer_store_dwordx4 {vr(48+4*t,4)}, v7, s[4:7], s22 offen", f"s_add_u32 s22, s22, {14*1024}")
    A("s_add_u32 s26, s26, 4", "s_cmp_lt_u32 s26, 14", "s_cbranch_scc1 K1_KS", "s_branch K1_END")
    A.lab("K1_MISC")
    A("s_sub_u32 s16, s2, 224")
    srd(A, 8, KA['x'], 2048*896)
    A("s_lshr_b32 s17, s20, 1", "s_lshl_b32 s18, s16, 1", "s_add_u32 s17, s17, s18", "s_and_b32 s18, s20, 1")
    A("s_lshl_b32 s19, s17, 1", "s_add_u32 s19, s19, s18")
    A("s_mul_i32 s22, s19, 14336", "s_mov_b32 s23, 896", "v_mul_lo_u32 v5, v3, s23", "v_lshl_add_u32 v5, v4, 4, v5")
    for kk in range(14): A(f"buffer_load_dwordx4 {vr(64+4*kk,4)}, v5, s[8:11], s22 offen offset:{kk*64}")
    A(f"s_add_u32 s22, s22, {XN}", "v_lshlrev_b32 v7, 4, v1")
    for kk in range(14):
        A(f"s_waitcnt vmcnt({13})" if kk == 0 else "s_waitcnt vmcnt(13)")
        A(f"buffer_store_dwordx4 {vr(64+4*kk,4)}, v7, s[4:7], s22 offen", "s_add_u32 s22, s22, 1024")
    for i in range(4): A(f"v_mov_b32 v{16+i}, -1", f"v_mov_b32 v{20+i}, 0")
    A("v_lshlrev_b32 v7, 4, v0", f"s_mul_i32 s22, s16, {13*4096}", f"s_add_u32 s22, s22, {MB}")
    for i in range(13): A("buffer_store_dwordx4 v[16:19], v7, s[4:7], s22 offen", "s_add_u32 s22, s22, 4096")
    A("s_cmp_eq_u32 s16, 1", "s_cbranch_scc0 K1_NOZ", f"s_mov_b32 s22, {CNT}")
    for i in range(14): A("buffer_store_dwordx4 v[20:23], v7, s[4:7], s22 offen", "s_add_u32 s22, s22, 4096")
    A.lab("K1_NOZ")
    A(f"s_mov_b32 s22, {MB}", "s_cmp_eq_u32 s16, 0", "s_cbranch_scc1 K1_MEM0", f"s_mov_b32 s22, {MB2}", "s_cmp_eq_u32 s16, 8", "s_cbranch_scc0 K1_END")
    A.lab("K1_MEM0")
    A("s_waitcnt vmcnt(0)", "s_barrier")
    srd(A, 8, KA['mem0'], 8*896)
    for rnd in range(2):
        A(f"v_add_u32 v5, {256*rnd}, v0", "v_lshrrev_b32 v6, 6, v5", "v_lshlrev_b32 v6, 7, v6",
          "v_bfe_u32 v8, v5, 4, 2", "v_lshl_add_u32 v6, v8, 5, v6", "v_bfe_u32 v8, v5, 3, 1", "v_lshl_add_u32 v6, v8, 2, v6",
          "v_and_b32 v8, 7, v5", "s_mov_b32 s23, 896", "v_mul_lo_u32 v8, v8, s23", "v_add_u32 v6, v6, v8", "v_lshlrev_b32 v9, 4, v5")
        if rnd == 1: A("v_cmp_gt_u32 vcc, 448, v5", "s_and_saveexec_b64 s[28:29], vcc", "s_cbranch_execz K1_END")
        for q in range(4): A(f"buffer_load_dword v{24+q}, v6, s[8:11], 0 offen offset:{8*q}")
        A("s_waitcnt vmcnt(0)", "buffer_store_dwordx4 v[24:27], v9, s[4:7], s22 offen", "s_nop 1")
    A.lab("K1_END")
    A("s_endpgm")
    return khead(name) + A.txt()
```

```python
from common import *
K2_LDS = 160*1024
SPIN = 1 << 22
def spin_wait(A, load, ok_branch_code):
    pass

def prologue(A):
    A("s_cmp_ge_u32 s2, 256", "s_cbranch_scc1 K2_END")
    srds(A, [(4, KA['ws'], WS_END), (8, KA['dbg'], 256)])
    A("v_and_b32 v1, 63, v0", "v_lshrrev_b32 v2, 6, v0", "s_nop 1", "v_readfirstlane_b32 s20, v2")
    stamp(A, 40)
    A(f"s_mov_b32 s23, {SPIN}")
    A("s_getreg_b32 s24, hwreg(HW_REG_XCC_ID)", "s_and_b32 s24, s24, 7")
    A("s_cmp_eq_u32 s20, 0", "s_cbranch_scc0 K2_PBAR")
    A("v_mov_b32 v3, 1", "s_lshl_b32 s25, s24, 2", "v_mov_b32 v4, s25")
    A("s_mov_b64 s[28:29], exec", "s_mov_b64 exec, 1")
    A("buffer_atomic_add v3, v4, s[8:11], 0 offen sc0")
    A("s_mov_b64 exec, s[28:29]")
    A("v_lshlrev_b32 v10, 2, v1")
    A.lab("K2_PSPIN")
    A("buffer_load_dword v7, v10, s[8:11], 0 offen sc1", "s_waitcnt vmcnt(0)", "s_mov_b32 s26, 0", "s_mov_b32 s30, 0")
    for x in range(8):
        A(f"v_readlane_b32 s33, v7, {x}", "s_add_u32 s26, s26, s33", f"s_cmp_gt_u32 s24, {x}", "s_cselect_b32 s33, s33, 0", "s_add_u32 s30, s30, s33")
    A("s_cmp_ge_u32 s26, 256", "s_cbranch_scc1 K2_PGO", "s_sub_u32 s23, s23, 64", "s_cmp_gt_i32 s23, 0", "s_cbranch_scc1 K2_PSPIN")
    A.lab("K2_PGO")
    A("v_readfirstlane_b32 s27, v3", "s_nop 3", "s_add_u32 s30, s30, s27")
    A("s_mov_b32 s31, 8", "s_mov_b32 s32, 0")
    for x in range(7, -1, -1):
        A(f"v_readlane_b32 s33, v7, {x}", "s_cmp_ge_u32 s33, 30", f"s_cselect_b32 s31, {x}, s31")
    for x in range(8):
        A(f"v_readlane_b32 s33, v7, {x}", f"s_cmp_eq_u32 s31, {x}", "s_cselect_b32 s34, 30, 0", "s_sub_u32 s33, s33, s34",
          f"s_cmp_gt_u32 s24, {x}", "s_cselect_b32 s33, s33, 0", "s_add_u32 s32, s32, s33")
    A("s_mov_b32 s22, 0", "s_cmp_eq_u32 s31, 8", "s_cbranch_scc1 K2_PFB")
    A("s_cmp_eq_u32 s31, s24", "s_cbranch_scc0 K2_PW", "s_cmp_lt_u32 s27, 30", "s_cbranch_scc0 K2_PW2", "s_mov_b32 s21, s27", "s_branch K2_PWR")
    A.lab("K2_PW2"); A("s_sub_u32 s27, s27, 30")
    A.lab("K2_PW"); A("s_add_u32 s21, s32, s27", "s_add_u32 s21, s21, 32", "s_branch K2_PWR")
    A.lab("K2_PFB"); A("s_mov_b32 s22, 1", "s_add_u32 s33, s30, 2", "s_cmp_lt_u32 s30, 30", "s_cselect_b32 s21, s30, s33")
    A.lab("K2_PWR")
    A("v_mov_b32 v3, s21", "v_mov_b32 v4, s22", "v_mov_b32 v5, 0", "ds_write_b64 v5, v[3:4]" if False else "v_mov_b32 v8, s21\nv_mov_b32 v9, s22\nds_write_b64 v5, v[8:9]", "s_waitcnt lgkmcnt(0)")
    A.lab("K2_PBAR")
    A("s_barrier", "v_mov_b32 v5, 0", "ds_read_b64 v[8:9], v5", "s_waitcnt lgkmcnt(0)", "v_readfirstlane_b32 s21, v8", "v_readfirstlane_b32 s22, v9", "s_barrier")
    A("v_and_b32 v3, 15, v1", "v_lshrrev_b32 v4, 4, v1")
    A("s_cmp_lt_u32 s21, 16", "s_cbranch_scc1 K2_AROLE", "s_cmp_lt_u32 s21, 30", "s_cbranch_scc1 K2_VROLE")
    A("s_sub_u32 s21, s21, 32", "s_cmp_ge_u32 s21, 224", "s_cbranch_scc1 K2_END")

def gemm_stage(A):
    A("s_cmp_ge_u32 s21, 112", "s_cselect_b32 s24, 1, 0", "s_mul_i32 s25, s24, 112", "s_sub_u32 s25, s21, s25",
      "s_mul_i32 s26, s25, 9363", "s_lshr_b32 s26, s26, 16", "s_mul_i32 s27, s26, 7", "s_sub_u32 s27, s25, s27")
    A("v_lshlrev_b32 v5, 4, v1")
    A(f"s_cmp_eq_u32 s24, 0", f"s_cselect_b32 s28, {WV}, {WA}", "s_mul_i32 s29, s26, 28", "s_lshl_b32 s30, s27, 2", "s_add_u32 s29, s29, s30",
      f"s_mul_i32 s29, s29, {14*FR}", "s_add_u32 s28, s28, s29")
    for t in range(4):
        for ks in range(14):
            A(f"buffer_load_dwordx4 {ar((t*14+ks)*4,4)}, v5, s[4:7], s28 offen" + (f" offset:{(ks%4)*1024}" if ks % 4 else ""))
            if ks % 4 == 3 or ks == 13: A(f"s_add_u32 s28, s28, {4096 if ks != 13 else 2048}")
    XB = 16
    AC = 128
    ST = 160
    def xloads(ks):
        for tt in range(2):
            A(f"s_add_u32 s33, s31, {(tt*14+ks)*FR}", f"buffer_load_dwordx4 {vr(XB+(tt*14+ks)*4,4)}, v5, s[4:7], s33 offen")
    A(f"s_mul_i32 s31, s20, {28*FR}", f"s_add_u32 s31, s31, {XN}")
    for ks in range(14): xloads(ks)
    A("s_mov_b32 s32, s20")
    A("v_mov_b32 v6, 0", "v_mov_b32 v7, 1")
    for mat in range(2):
        L = f"K2_G{mat}"
        if mat == 0:
            A("s_cmp_eq_u32 s24, 0", "s_cbranch_scc0 K2_G1PRE")
            A("s_mul_i32 s34, s26, 448", "s_lshl_b32 s35, s27, 6", "s_add_u32 s34, s34, s35", "s_lshl_b32 s34, s34, 6", f"s_add_u32 s34, s34, {XVO}",
              "v_mov_b32 v8, v5", f"s_mov_b32 s36, {CX}")
            segsz = SEG_XVO
        else:
            A.lab("K2_G1PRE")
            A("s_mul_i32 s34, s26, 28", "s_lshl_b32 s35, s27, 1", "s_add_u32 s34, s34, s35", "s_lshl_b32 s34, s34, 10", f"s_add_u32 s34, s34, {TT}",
              "v_mov_b32 v8, v5", f"s_mov_b32 s36, {CT}")
            segsz = SEG_T
        A("s_waitcnt vmcnt(0)")
        A.lab(L)
        A(f"s_add_u32 s31, s31, {4*28*FR}")
        for i in range(32): A(f"v_mov_b32 v{AC+i}, 0")
        for ks in range(14):
            A("s_waitcnt vmcnt(31)")
            for tt in range(2):
                for t in range(4):
                    d = vr(AC+(tt*4+t)*4, 4); xf = vr(XB+(tt*14+ks)*4, 4); wf = ar((t*14+ks)*4, 4)
                    A(f"v_mfma_f32_16x16x32_bf16 {d}, {xf}, {wf}, {d}" if mat == 0 else f"v_mfma_f32_16x16x32_bf16 {d}, {wf}, {xf}, {d}")
            xloads(ks)
        A("s_waitcnt vmcnt(28)")
        sk = A.new("GS")
        A("s_cmp_lt_u32 s32, 4", f"s_cbranch_scc1 {sk}", "s_sub_u32 s33, s32, 4", "s_lshl_b32 s33, s33, 7", "s_add_u32 s33, s33, s36",
          "s_mov_b64 exec, 1", "buffer_atomic_add v7, v6, s[4:7], s33 offen", "s_mov_b64 exec, -1", f"s_branch {sk}_b")
        A.lab(sk); A("buffer_load_dword v9, v6, s[4:7], 0 offen")
        A.lab(sk + "_b")
        A(f"s_mul_i32 s33, s32, {segsz}", "s_add_u32 s33, s33, s34")
        for q in range(4):
            if mat == 0: srcs = [(0, q), (1, q)]; off = q*16*64
            else: srcs = [(q//2, 2*(q % 2)), (q//2, 2*(q % 2)+1)]; off = (q//2)*14*FR + (q % 2)*FR
            for i, (tt, t) in enumerate(srcs):
                d = AC+(tt*4+t)*4
                A(f"v_cvt_pk_bf16_f32 v{ST+4*q+2*i}, v{d}, v{d+1}", f"v_cvt_pk_bf16_f32 v{ST+4*q+2*i+1}, v{d+2}, v{d+3}")
            A(f"s_add_u32 s35, s33, {off}", f"buffer_store_dwordx4 {vr(ST+4*q,4)}, v8, s[4:7], s35 offen sc1")
        A("s_add_u32 s32, s32, 4", "s_cmp_lt_u32 s32, 64", f"s_cbranch_scc1 {L}")
        A("s_waitcnt vmcnt(0)", "s_sub_u32 s33, s32, 4", "s_lshl_b32 s33, s33, 7", "s_add_u32 s33, s33, s36",
          "s_mov_b64 exec, 1", "buffer_atomic_add v7, v6, s[4:7], s33 offen", "s_mov_b64 exec, -1")
        if mat == 0: A("s_branch K2_GDONE")
    A.lab("K2_GDONE")
    stamp(A, 45)

def gen_k2(name):
    A = Asm()
    prologue(A)
    gemm_stage(A)
    try:
        from k2w import worker_rest
        worker_rest(A)
    except ImportError: pass
    A("s_branch K2_END")
    try:
        from chain import arole, vrole
        A.lab("K2_AROLE"); arole(A); A("s_branch K2_END")
        A.lab("K2_VROLE"); vrole(A)
    except ImportError:
        A.lab("K2_AROLE"); A.lab("K2_VROLE")
    A.lab("K2_END")
    A("s_endpgm")
    return khead(name) + A.txt()
```

```python
from common import *
from chain import poll_m, OOB
LOG2E = 0x3fb8aa3b
def spin1(A, tag, vcnt, soff, cond_thr):
    A.lab(tag)
    A(f"buffer_load_dword v10, {vcnt}, s[4:7], {soff} offen sc1", "s_waitcnt vmcnt(0)", f"v_cmp_lt_u32 vcc, v10, {cond_thr}",
      f"s_cbranch_vccz {tag}_ok", "s_sub_u32 s23, s23, 1", "s_cmp_gt_i32 s23, 0", f"s_cbranch_scc1 {tag}")
    A.lab(tag + "_ok")
def signal(A, soff):
    A("s_waitcnt vmcnt(0)", "s_mov_b64 s[38:39], exec", "s_mov_b64 exec, 1", f"buffer_atomic_add v19, v15, s[4:7], {soff} offen", "s_mov_b64 exec, s[38:39]")
def red4(A, op, x, t):
    A(f"v_mov_b32 v{t}, v{x}", "s_nop 1", f"v_permlane16_swap_b32 v{t}, v{x}", "s_nop 1", f"{op} v{x}, v{t}, v{x}",
      f"v_mov_b32 v{t}, v{x}", "s_nop 1", f"v_permlane32_swap_b32 v{t}, v{x}", "s_nop 1", f"{op} v{x}, v{t}, v{x}")

def s5(A):
    XB, AC = 20, 132
    GOFF = 59392
    A("s_cmp_ge_u32 s21, 128", "s_cbranch_scc1 W_F")
    A("s_lshr_b32 s24, s21, 1", "s_and_b32 s25, s21, 1")
    srd(A, 56, KA['x'], 2048*448*2)
    srd(A, 52, KA['gatew'], 896)
    A("v_lshrrev_b32 v6, 3, v0", "v_and_b32 v7, 7, v0", "v_mul_u32_u24 v8, 112, v7", "v_mul_u32_u24 v9, 896, v6", "v_add_u32 v9, v9, v8", "s_mul_i32 s26, s24, 28672")
    for k in range(7):
        A(f"buffer_load_dwordx4 {vr(XB+4*k,4)}, v9, s[56:59], s26 offen offset:{16*k}", f"buffer_load_dwordx4 {vr(XB+28+4*k,4)}, v8, s[52:55], 0 offen offset:{16*k}")
    A("v_mov_b32 v9, 0", "s_waitcnt vmcnt(0)")
    for d in range(28):
        a, b = XB+d, XB+28+d
        A(f"v_lshlrev_b32 v10, 16, v{a}", f"v_and_b32 v11, 0xffff0000, v{a}", f"v_lshlrev_b32 v12, 16, v{b}", f"v_and_b32 v13, 0xffff0000, v{b}",
          "v_mul_f32 v10, v10, v12", "v_mul_f32 v11, v11, v13", "v_cvt_pk_bf16_f32 v10, v10, v11", "v_and_b32 v11, 0xffff0000, v10", "v_lshlrev_b32 v10, 16, v10",
          "v_add_f32 v9, v9, v10", "v_add_f32 v9, v9, v11")
    A("s_nop 1", "v_add_f32_dpp v9, v9, v9 quad_perm:[1,0,3,2] row_mask:0xf bank_mask:0xf", "s_nop 1", "v_add_f32_dpp v9, v9, v9 quad_perm:[2,3,0,1] row_mask:0xf bank_mask:0xf",
      "s_nop 1", "v_add_f32_dpp v9, v9, v9 row_half_mirror row_mask:0xf bank_mask:0xf",
      "v_cvt_pk_bf16_f32 v9, v9, v9", "v_lshlrev_b32 v9, 16, v9", "v_mul_f32 v9, 0xbfb8aa3b, v9", "v_exp_f32 v9, v9", "s_nop 0", "v_add_f32 v9, 1.0, v9", "v_rcp_f32 v9, v9", "s_nop 0",
      "v_cvt_pk_bf16_f32 v9, v9, v9", "v_lshlrev_b32 v9, 16, v9", "v_sub_f32 v10, 1.0, v9", "v_cvt_pk_bf16_f32 v10, v10, v10", "v_lshlrev_b32 v10, 16, v10",
      "v_lshlrev_b32 v11, 2, v6", f"ds_write_b32 v11, v9 offset:{GOFF}", "s_lshl_b32 s26, s24, 7", f"s_add_u32 s26, s26, {GT}", "buffer_store_dword v10, v11, s[4:7], s26 offen sc1")
    A("s_cmp_lt_u32 s20, 2", "s_cbranch_scc1 S5_BRE"); srd(A, 40, KA['bim'], 401408); A("s_branch S5_BOK"); A.lab("S5_BRE"); srd(A, 40, KA['bre'], 401408); A.lab("S5_BOK")
    srd(A, 44, KA['cre'], 401408); srd(A, 48, KA['cim'], 401408)
    A("v_mul_u32_u24 v6, 896, v3", "v_lshl_add_u32 v6, v4, 4, v6")
    A("s_mul_i32 s26, s25, 224", "s_and_b32 s27, s20, 1", "s_mul_i32 s27, s27, 112", "s_add_u32 s26, s26, s27", "s_mul_i32 s26, s26, 896")
    A("s_mul_i32 s27, s20, 100352", "s_mul_i32 s36, s25, 448", "s_add_u32 s27, s27, s36")
    for i in range(7): A(f"s_add_u32 s{28+i}, s26, {i*14336}", f"s_add_u32 s{80+i}, s27, {i*14336}")
    A("s_mul_i32 s35, s24, 28672", f"s_add_u32 s35, s35, {XN}", "s_waitcnt vmcnt(0)")
    for f in range(28):
        if f % 4 == 0 and f: A("s_add_u32 s35, s35, 4096")
        A(f"buffer_load_dwordx4 {vr(XB+4*f,4)}, v5, s[4:7], s35 offen offset:{(f%4)*1024}")
    def wld(slot, kind, ks):
        for i in range(7):
            sd, so, ex = {'b': ("s[40:43]", 28, 0), 'cr': ("s[44:47]", 80, 0), 'ci': ("s[48:51]", 80, 0)}[kind]
            A(f"buffer_load_dwordx4 {ar((slot*7+i)*4,4)}, v6, {sd}, s{so+i} offen offset:{ks*64}")
    for ks in range(7): wld(ks, 'b', ks)
    for i in range(56): A(f"v_mov_b32 v{AC+i}, 0")
    for ks in range(14):
        A("s_waitcnt vmcnt(42)")
        for i in range(7):
            for tt in range(2):
                d = vr(AC+(i*2+tt)*4, 4)
                A(f"v_mfma_f32_16x16x32_bf16 {d}, {ar(((ks%7)*7+i)*4,4)}, {vr(XB+(tt*14+ks)*4,4)}, {d}")
        if ks < 7: wld(ks, 'b', ks+7)
        else: wld(ks-7, 'cr', ks-7)
    A("v_mul_u32_u24 v7, 1808, v3", "v_lshl_add_u32 v7, v4, 4, v7", "s_mul_i32 s26, s20, 448", "v_add_u32 v7, s26, v7", "s_nop 7")
    for i in range(7):
        for tt in range(2): A(f"ds_write_b128 v7, {vr(AC+(i*2+tt)*4,4)} offset:{tt*28928+i*64}")
    srd(A, 52, KA['lre'], 896); A("s_mul_i32 s26, s25, 448", "v_lshlrev_b32 v8, 1, v0", "buffer_load_ushort v10, v8, s[52:55], s26 offen", "s_waitcnt vmcnt(0)")
    srd(A, 52, KA['lim'], 896); A("buffer_load_ushort v11, v8, s[52:55], s26 offen", "s_waitcnt vmcnt(0)")
    srd(A, 52, KA['logdt'], 896); A("buffer_load_ushort v12, v8, s[52:55], s26 offen", "s_waitcnt vmcnt(0) lgkmcnt(0)", "s_barrier")
    A("v_cmp_gt_u32 vcc, 224, v0", "s_and_saveexec_b64 s[36:37], vcc")
    A("v_lshlrev_b32 v7, 2, v0")
    for t in range(32):
        A(f"ds_read_b32 v{XB+2*t}, v7 offset:{t*1808}", f"ds_read_b32 v{XB+2*t+1}, v7 offset:{t*1808+896}")
    A("v_lshlrev_b32 v10, 16, v10", "v_lshlrev_b32 v11, 16, v11", "v_lshlrev_b32 v12, 16, v12",
      "v_mul_f32 v12, 0x3fb8aa3b, v12", "v_exp_f32 v12, v12", "s_nop 0", "v_cvt_pk_bf16_f32 v12, v12, v12", "v_lshlrev_b32 v12, 16, v12",
      "v_mul_f32 v13, v12, v10", "v_mul_f32 v14, v12, v11", "v_mul_f32 v13, 0x3fb8aa3b, v13", "v_exp_f32 v13, v13",
      "v_mul_f32 v14, 0.15915494, v14", "v_rndne_f32 v12, v14", "v_sub_f32 v14, v14, v12", "v_cos_f32 v12, v14", "v_sin_f32 v14, v14", "s_nop 0",
      "v_mul_f32 v85, v13, v12", "v_mul_f32 v86, v13, v14",
      "v_add_f32 v12, -1.0, v85", "v_mul_f32 v13, v10, v10", "v_fma_f32 v13, v11, v11, v13", "v_rcp_f32 v13, v13", "s_nop 0",
      "v_mul_f32 v87, v12, v10", "v_fma_f32 v87, v86, v11, v87", "v_mul_f32 v88, v86, v10", "v_fma_f32 v88, -v12, v11, v88",
      "v_mul_f32 v87, v87, v13", "v_mul_f32 v88, v88, v13",
      "s_waitcnt lgkmcnt(0)")
    A("v_mov_b32 v90, 0", "v_mov_b32 v91, 0")
    def step(t, hr, hi, w0):
        p, q = XB+2*t, XB+2*t+1
        A(f"v_fma_f32 v{w0}, v85, v{hr}, v{p}", f"v_fma_f32 v{w0+1}, v85, v{hi}, v{q}", f"v_fma_f32 v{w0}, -v86, v{hi}, v{w0}", f"v_fma_f32 v{hi}, v86, v{hr}, v{w0+1}", f"v_mov_b32 v{hr}, v{w0}")
    for t in range(32):
        p, q = XB+2*t, XB+2*t+1
        A(f"v_mul_f32 v12, v87, v{p}", f"v_mul_f32 v13, v87, v{q}", f"v_fma_f32 v12, -v88, v{q}, v12", f"v_fma_f32 v{q}, v88, v{p}, v13", f"v_mov_b32 v{p}, v12")
        step(t, 90, 91, 92)
    A("s_mul_i32 s26, s24, 3584", "s_mul_i32 s27, s25, 1792", "s_add_u32 s26, s26, s27", f"s_add_u32 s26, s26, {EB}", "v_lshlrev_b32 v8, 3, v0",
      "buffer_store_dwordx2 v[90:91], v8, s[4:7], s26 offen sc1")
    A("s_lshl_b32 s26, s24, 7", f"s_add_u32 s26, s26, {CE}", "v_mov_b32 v15, 0", "v_mov_b32 v19, 1"); signal(A, "s26")
    A("v_mov_b32 v94, v85", "v_mov_b32 v95, v86")
    for k in range(5): A("v_mul_f32 v12, v94, v94", "v_mul_f32 v13, v94, v95", "v_fma_f32 v94, -v95, v95, v12", "v_add_f32 v95, v13, v13")
    A("v_mov_b32 v90, 0", "v_mov_b32 v91, 0", "s_cmp_eq_u32 s24, 0", "s_cbranch_scc1 S5_NOC")
    A("s_mov_b64 exec, s[36:37]")
    A("v_lshlrev_b32 v9, 7, v1", "v_cmp_gt_u32 vcc, s24, v1", "v_mov_b32 v11, 0", "v_mov_b32 v12, 8", "s_nop 0", "v_cndmask_b32 v11, v11, v12, vcc", f"s_mov_b32 s26, {CE}")
    spin1(A, "S5_CE", "v9", "s26", "v11")
    A("v_cmp_gt_u32 vcc, 224, v0", "s_and_saveexec_b64 s[36:37], vcc")
    A("s_mul_i32 s26, s25, 1792", f"s_add_u32 s26, s26, {EB}", "s_mov_b32 s27, 0")
    A.lab("S5_CL")
    for k in range(8): A(f"buffer_load_dwordx2 {vr(96+2*k,2)}, v8, s[4:7], s26 offen sc1", "s_add_u32 s26, s26, 3584")
    A("s_waitcnt vmcnt(0)")
    for k in range(8):
        A("v_fma_f32 v12, v94, v90, v%d" % (96+2*k), "v_fma_f32 v13, v94, v91, v%d" % (97+2*k), "v_fma_f32 v12, -v95, v91, v12", "v_fma_f32 v91, v95, v90, v13", "v_mov_b32 v90, v12",
          "s_add_u32 s27, s27, 1", "s_cmp_ge_u32 s27, s24", "s_cbranch_scc1 S5_NOC")
    A("s_branch S5_CL")
    A.lab("S5_NOC")
    A("s_mov_b64 exec, s[36:37]", "s_barrier", "v_cmp_gt_u32 vcc, 224, v0", "s_and_saveexec_b64 s[36:37], vcc")
    A("v_lshlrev_b32 v7, 1, v0")
    for t in range(32):
        step(t, 90, 91, 92)
        A("v_cvt_pk_bf16_f32 v12, v90, -v91", f"ds_write_b16 v7, v12 offset:{t*912}", f"ds_write_b16_d16_hi v7, v12 offset:{t*912+448}")
    A("s_mov_b64 exec, s[36:37]", "s_waitcnt lgkmcnt(0)", "s_barrier")
    A("v_mul_u32_u24 v7, 912, v3", "v_lshl_add_u32 v7, v4, 4, v7")
    for tt in range(2):
        for ks in range(14): A(f"ds_read_b128 {vr(XB+(tt*14+ks)*4,4)}, v7 offset:{tt*14592+ks*64}")
    for i in range(56): A(f"v_mov_b32 v{AC+i}, 0")
    A("s_waitcnt vmcnt(0) lgkmcnt(0)")
    for ks in range(14):
        if ks >= 7: A(f"s_waitcnt vmcnt({7*(13-ks)})")
        for i in range(7):
            for tt in range(2):
                d = vr(AC+(i*2+tt)*4, 4)
                A(f"v_mfma_f32_16x16x32_bf16 {d}, {ar(((ks%7)*7+i)*4,4)}, {vr(XB+(tt*14+ks)*4,4)}, {d}")
        if ks < 7: wld(ks, 'ci', ks)
    A("v_lshlrev_b32 v7, 2, v3", f"ds_read_b32 v8, v7 offset:{GOFF}", f"ds_read_b32 v9, v7 offset:{GOFF+64}", "s_nop 7")
    for i in range(56): A(f"v_add_f32 v{AC+i}, v{AC+i}, v{AC+i}")
    A("s_cmp_eq_u32 s25, 0", "s_cbranch_scc0 S5_NOD")
    srd(A, 52, KA['dskip'], 896)
    A("v_mul_u32_u24 v6, 896, v3", "v_lshl_add_u32 v6, v4, 3, v6", "v_lshlrev_b32 v7, 3, v4", "s_mul_i32 s26, s24, 28672", "s_mul_i32 s27, s20, 224", "s_add_u32 s26, s26, s27", "s_add_u32 s28, s26, 14336")
    for i in range(7):
        A(f"buffer_load_dwordx2 {vr(XB+4*i,2)}, v6, s[56:59], s26 offen offset:{i*32}", f"buffer_load_dwordx2 {vr(XB+4*i+2,2)}, v6, s[56:59], s28 offen offset:{i*32}",
          f"buffer_load_dwordx2 {vr(XB+28+2*i,2)}, v7, s[52:55], s27 offen offset:{i*32}")
    A("s_waitcnt vmcnt(0)")
    for i in range(7):
        for tt in range(2):
            for k in range(2):
                a, b, d = XB+4*i+2*tt+k, XB+28+2*i+k, AC+(i*2+tt)*4+2*k
                A(f"v_lshlrev_b32 v10, 16, v{a}", f"v_and_b32 v11, 0xffff0000, v{a}", f"v_lshlrev_b32 v12, 16, v{b}", f"v_and_b32 v13, 0xffff0000, v{b}",
                  "v_mul_f32 v10, v10, v12", "v_mul_f32 v11, v11, v13", "v_cvt_pk_bf16_f32 v10, v10, v11", "v_and_b32 v11, 0xffff0000, v10", "v_lshlrev_b32 v10, 16, v10",
                  f"v_add_f32 v{d}, v{d}, v10", f"v_add_f32 v{d+1}, v{d+1}, v11")
    A.lab("S5_NOD")
    A("s_waitcnt lgkmcnt(0)", f"s_mul_i32 s26, s25, {64*SEG_A}", f"s_mul_i32 s27, s24, {SEG_A}", "s_add_u32 s26, s26, s27", "s_mul_i32 s27, s20, 14336", "s_add_u32 s26, s26, s27", f"s_add_u32 s26, s26, {AB}")
    for i in range(7):
        for tt in range(2):
            d = AC+(i*2+tt)*4
            for r in range(4): A(f"v_mul_f32 v{d+r}, v{8+tt}, v{d+r}")
            f = i*2+tt
            if f % 4 == 0 and f: A("s_add_u32 s26, s26, 4096")
            A(f"buffer_store_dwordx4 {vr(d,4)}, v5, s[4:7], s26 offen offset:{(f%4)*1024} sc1")
    A("s_lshl_b32 s26, s24, 7", f"s_add_u32 s26, s26, {CA}"); signal(A, "s26")
    A("s_waitcnt lgkmcnt(0)", "s_barrier")

def f1(A):
    TB, MM, AC = 20, 132, 188
    A("s_lshl_b32 s27, s26, 2", "s_add_u32 s27, s27, s20")
    A("v_lshlrev_b32 v9, 4, v0", "v_mov_b32 v6, v9", "v_add_u32 v7, 4096, v9", "v_cmp_gt_u32 vcc, 192, v0", f"v_mov_b32 v10, {OOB}", "s_nop 1", "v_cndmask_b32 v7, v10, v7, vcc")
    A("v_lshrrev_b32 v10, 1, v4", "v_lshlrev_b32 v10, 8, v10", "v_and_b32 v11, 7, v3", "v_lshl_add_u32 v10, v11, 4, v10", "v_and_b32 v11, 1, v4", "v_lshl_add_u32 v16, v11, 3, v10")
    A("v_cmp_gt_u32 vcc, 2, v4", "v_mov_b32 v10, 0", "v_mov_b32 v11, 1.0", "s_nop 0", "v_cndmask_b32 v17, v10, v11, vcc")
    for r in range(4): A(f"v_lshl_add_u32 v10, v4, 2, {r}", f"v_cmp_le_u32 s[{44+2*r}:{45+2*r}], v10, v3")
    A("v_mov_b32 v14, 112", "v_mov_b32 v18, 0xf149f2ca", "v_lshlrev_b32 v8, 4, v1", "s_and_b32 s28, s27, 1", "s_lshl_b32 s28, s28, 3", "v_add_u32 v8, s28, v8")
    A.lab("F1_LOOP")
    A("s_mul_i32 s28, s24, 28672", f"s_add_u32 s28, s28, {XN}")
    for f in range(28):
        if f % 4 == 0 and f: A("s_add_u32 s28, s28, 4096")
        A(f"buffer_load_dwordx4 {ar(4*f,4)}, v5, s[4:7], s28 offen offset:{(f%4)*1024}")
    A("s_lshl_b32 s28, s24, 7", f"s_add_u32 s28, s28, {CT}"); spin1(A, "F1_CT", "v15", "s28", "v14")
    A(f"s_mul_i32 s28, s24, {SEG_T}", "s_mul_i32 s29, s27, 28672", "s_add_u32 s28, s28, s29", f"s_add_u32 s28, s28, {TT}")
    for f in range(28):
        if f % 4 == 0 and f: A("s_add_u32 s28, s28, 4096")
        A(f"buffer_load_dwordx4 {vr(TB+4*f,4)}, v5, s[4:7], s28 offen offset:{(f%4)*1024} sc1")
    for i in range(20): A(f"v_mov_b32 v{AC+i}, 0")
    A("s_waitcnt vmcnt(0)")
    for kk in range(14):
        A(f"v_mfma_f32_16x16x32_bf16 {vr(AC,4)}, {ar(4*kk,4)}, {vr(TB+4*kk,4)}, {vr(AC,4)}")
        for kt in range(2): A(f"v_mfma_f32_16x16x32_bf16 {vr(AC+8+4*kt,4)}, {ar(4*(kt*14+kk),4)}, {vr(TB+4*(14+kk),4)}, {vr(AC+8+4*kt,4)}")
    A(f"s_mul_i32 s28, s24, {MSZ}", f"s_add_u32 s28, s28, {MB2}")
    poll_m(A, "F1_PM", "v6", "v7", "s28", 208)
    for kk in range(14):
        for r, d in enumerate((0, 128, 4, 132)): A(f"ds_read_b32 v{MM+4*kk+r}, v16 offset:{kk*512+d}")
    A("s_waitcnt lgkmcnt(0)", "s_barrier")
    for kk in range(14):
        for tq in range(2):
            d = vr(AC+4+12*tq, 4)
            A(f"v_mfma_f32_16x16x32_bf16 {d}, {vr(MM+4*kk,4)}, {vr(TB+4*(tq*14+kk),4)}, {d}")
    A("s_nop 7", "s_nop 1")
    A(f"s_mul_i32 s28, s24, {SEG_PT}", f"s_add_u32 s28, s28, {PT}", "s_lshl_b32 s29, s27, 10", "s_add_u32 s29, s29, s28", "s_lshr_b32 s30, s27, 1", "s_add_u32 s30, s30, 16", "s_lshl_b32 s30, s30, 10", "s_add_u32 s30, s30, s28")
    for tq in range(2):
        if tq == 0: xs = list(range(AC, AC+4)); dg = AC; ms = list(range(AC+4, AC+8))
        else: xs = list(range(AC+8, AC+16)); dg = AC+12; ms = list(range(AC+16, AC+20))
        for r in range(4): A(f"v_cndmask_b32 v{dg+r}, v18, v{dg+r}, s[{44+2*r}:{45+2*r}]")
        al = xs + ms
        A(f"v_max_f32 v10, v{al[0]}, v{al[1]}")
        for k in range(2, len(al), 2): A(f"v_max3_f32 v10, v10, v{al[k]}, v{al[k+1]}")
        red4(A, "v_max_f32", 10, 11)
        A("v_mul_f32 v10, 0xbfb8aa3b, v10", "v_mov_b32 v12, 0x3fb8aa3b")
        for k in al: A(f"v_fma_f32 v{k}, v{k}, v12, v10")
        for k in al: A(f"v_exp_f32 v{k}, v{k}")
        A("s_nop 0", f"v_add_f32 v10, v{ms[0]}, v{ms[1]}", f"v_add_f32 v10, v10, v{ms[2]}", f"v_add_f32 v10, v10, v{ms[3]}", "v_mul_f32 v10, v10, v17")
        for k in xs: A(f"v_add_f32 v10, v10, v{k}")
        red4(A, "v_add_f32", 10, 11)
        A("v_rcp_f32 v10, v10", "s_nop 0")
        for k in al: A(f"v_mul_f32 v{k}, v{k}, v10")
        o = 208 + 8*tq
        A(f"v_cvt_pk_bf16_f32 v{o}, v{xs[0]}, v{xs[1]}", f"v_cvt_pk_bf16_f32 v{o+1}, v{xs[2]}, v{xs[3]}")
        if tq == 0: A(f"v_mov_b32 v{o+2}, 0", f"v_mov_b32 v{o+3}, 0")
        else: A(f"v_cvt_pk_bf16_f32 v{o+2}, v{xs[4]}, v{xs[5]}", f"v_cvt_pk_bf16_f32 v{o+3}, v{xs[6]}, v{xs[7]}")
        A(f"v_cvt_pk_bf16_f32 v{o+4}, v{ms[0]}, v{ms[1]}", f"v_cvt_pk_bf16_f32 v{o+5}, v{ms[2]}, v{ms[3]}")
        A(f"buffer_store_dwordx4 {vr(o,4)}, v5, s[4:7], s29 offen sc1", f"buffer_store_dwordx2 {vr(o+4,2)}, v8, s[4:7], s30 offen sc1")
        if tq == 0: A("s_add_u32 s29, s29, 24576", "s_add_u32 s30, s30, 24576")
    A("s_lshl_b32 s28, s24, 7", f"s_add_u32 s28, s28, {CP}"); signal(A, "s28")
    A("s_add_u32 s24, s24, 20", "s_cmp_lt_u32 s24, 64", "s_cbranch_scc1 F1_LOOP", "s_branch K2_END")

def f2(A):
    XV, GF, AC, GA = 20, 84, 116, 124
    srd(A, 40, KA['out'], 2048*448*4)
    A("s_sub_u32 s27, s26, 4", "s_lshl_b32 s27, s27, 2", "s_add_u32 s27, s27, s20")
    A("v_cmp_eq_u32 vcc, 1, v1", "v_mov_b32 v10, 0", f"v_mov_b32 v11, {CA-CX}", "s_nop 0", "v_cndmask_b32 v6, v10, v11, vcc", f"v_mov_b32 v11, {CP-CG}", "v_cndmask_b32 v7, v10, v11, vcc",
      "v_mov_b32 v10, 112", "v_mov_b32 v11, 8", "v_cndmask_b32 v8, v10, v11, vcc", "v_mov_b32 v10, 56", "v_mov_b32 v11, 16", "v_cndmask_b32 v9, v10, v11, vcc")
    A("v_lshlrev_b32 v16, 4, v1", "v_mul_u32_u24 v17, 1792, v3", "v_lshl_add_u32 v17, v4, 4, v17", "v_lshlrev_b32 v18, 2, v3")
    A.lab("F2_LOOP")
    A("s_lshl_b32 s28, s24, 7", f"s_add_u32 s28, s28, {CX}"); spin1(A, "F2_W1", "v6", "s28", "v8")
    A(f"s_mul_i32 s28, s24, {SEG_XVO}", "s_lshl_b32 s29, s27, 10", "s_add_u32 s28, s28, s29", f"s_add_u32 s28, s28, {XVO}")
    for h in range(16): A(f"buffer_load_dwordx4 {vr(XV+4*h,4)}, v16, s[4:7], s28 offen sc1", "s_add_u32 s28, s28, 28672")
    A(f"s_mul_i32 s28, s24, {SEG_A}", "s_lshl_b32 s29, s27, 11", "s_add_u32 s28, s28, s29", f"s_add_u32 s28, s28, {AB}", f"s_add_u32 s29, s28, {64*SEG_A}")
    for tt in range(2): A(f"buffer_load_dwordx4 {vr(GA+4*tt,4)}, v5, s[4:7], s28 offen offset:{tt*1024} sc1", f"buffer_load_dwordx4 {vr(GA+8+4*tt,4)}, v5, s[4:7], s29 offen offset:{tt*1024} sc1")
    A("s_lshl_b32 s28, s24, 7", f"s_add_u32 s28, s28, {GT}", "buffer_load_dword v140, v18, s[4:7], s28 offen sc1", "buffer_load_dword v141, v18, s[4:7], s28 offen offset:64 sc1")
    A("s_lshl_b32 s28, s24, 7", f"s_add_u32 s28, s28, {CG}"); spin1(A, "F2_W2", "v7", "s28", "v9")
    A(f"s_mul_i32 s28, s24, {SEG_PT}", f"s_add_u32 s28, s28, {PT}")
    A("s_mul_i32 s29, s20, 12288", "s_add_u32 s28, s28, s29", "v_add_u32 v14, s29, v5")
    for f in range(12):
        if f % 4 == 0 and f: A("s_add_u32 s28, s28, 4096")
        A(f"buffer_load_dwordx4 {vr(144+4*f,4)}, v5, s[4:7], s28 offen offset:{(f%4)*1024} sc1")
    A(f"s_mul_i32 s28, s24, {SEG_G}", "s_lshl_b32 s29, s27, 13", "s_add_u32 s28, s28, s29", f"s_add_u32 s28, s28, {GB}", "s_add_u32 s29, s28, 4096")
    for p in range(8): A(f"buffer_load_dwordx4 {vr(GF+4*p,4)}, v5, s[4:7], {'s28' if p < 4 else 's29'} offen offset:{(p%4)*1024} sc1")
    for i in range(8): A(f"v_mov_b32 v{AC+i}, 0")
    A("s_waitcnt vmcnt(8)")
    for f in range(12): A(f"ds_write_b128 v14, {vr(144+4*f,4)} offset:{f*1024}")
    A("s_waitcnt lgkmcnt(0)", "s_barrier")
    for f in range(48): A(f"ds_read_b128 {ar(4*f,4)}, v5 offset:{f*1024}")
    A("s_waitcnt vmcnt(0) lgkmcnt(0)", "s_barrier")
    for f in range(24):
        a = vr(XV+4*f, 4) if f < 16 else vr(GF+4*(f-16), 4)
        for tt in range(2): A(f"v_mfma_f32_16x16x32_bf16 {vr(AC+4*tt,4)}, {a}, {ar(4*(tt*24+f),4)}, {vr(AC+4*tt,4)}")
    A("s_nop 7", "s_nop 1", "s_mul_i32 s28, s24, 57344", "s_lshl_b32 s29, s27, 6", "s_add_u32 s28, s28, s29")
    for tt in range(2):
        d = AC+4*tt
        for k in range(2):
            A(f"v_cvt_pk_bf16_f32 v10, v{d+2*k}, v{d+2*k+1}", "v_and_b32 v11, 0xffff0000, v10", "v_lshlrev_b32 v10, 16, v10",
              f"v_mul_f32 v10, v{140+tt}, v10", f"v_mul_f32 v11, v{140+tt}, v11", "v_cvt_pk_bf16_f32 v10, v10, v11", "v_and_b32 v11, 0xffff0000, v10", "v_lshlrev_b32 v10, 16, v10",
              f"v_add_f32 v{d+2*k}, v{GA+4*tt+2*k}, v{GA+8+4*tt+2*k}", f"v_add_f32 v{d+2*k+1}, v{GA+4*tt+2*k+1}, v{GA+8+4*tt+2*k+1}",
              f"v_add_f32 v{d+2*k}, v{d+2*k}, v10", f"v_add_f32 v{d+2*k+1}, v{d+2*k+1}, v11")
        A(f"buffer_store_dwordx4 {vr(d,4)}, v17, s[40:43], s28 offen")
        if tt == 0: A("s_add_u32 s28, s28, 28672")
    A("s_add_u32 s24, s24, 20", "s_cmp_lt_u32 s24, 64", "s_cbranch_scc1 F2_LOOP", "s_waitcnt vmcnt(0)", "s_branch K2_END")

def worker_rest(A):
    A("v_mov_b32 v15, 0", "v_mov_b32 v19, 1")
    s5(A)
    A.lab("W_F")
    stamp(A, 46)
    A("v_mov_b32 v15, 0", "v_mov_b32 v19, 1")
    A("s_cmp_ge_u32 s21, 220", "s_cbranch_scc1 K2_END")
    A("s_mul_i32 s24, s21, 5958", "s_lshr_b32 s24, s24, 16", "s_mul_i32 s25, s24, 11", "s_sub_u32 s26, s21, s25")
    A("s_cmp_lt_u32 s26, 4", "s_cbranch_scc0 W_F2")
    f1(A)
    A.lab("W_F2")
    f2(A)
```

```python
import sys
sys.path.insert(0, 'gen')
from common import *
from k1 import gen_k1
try:
    from k2 import gen_k2, K2_LDS
except ImportError:
    gen_k2 = None
hdr = open(f'cdna_kernels/{NAME}.s.ref').read().split('; Override launch')[0]
out = hdr
out += "; @launch kernel=prep_kernel grid=(256,1,1) block=(256,1,1) lds=32768\n"
if gen_k2: out += f"; @launch kernel=main_kernel grid=(256,1,1) block=(256,1,1) lds={K2_LDS}\n"
out += '.amdgcn_target "amdgcn-amd-amdhsa--gfx950"\n.text\n'
out += gen_k1("prep_kernel")
if gen_k2: out += gen_k2("main_kernel")
out += '.section .rodata,"a"\n' + kdesc("prep_kernel", 256, 256)
if gen_k2: out += kdesc("main_kernel", 512, 256)
dst = sys.argv[1] if len(sys.argv) > 1 else f'cdna_kernels/{NAME}.s'
open(dst, 'w').write(out)
```

```python
NAME = "gated_mix__ssm_conv_s5__memory_aug_recurrent_mem_tr__prompt"
KA = dict(x=0, lre=8, lim=16, bre=24, bim=32, cre=40, cim=48, logdt=56, dskip=64, mem0=80,
          wq=88, wk=96, wv=104, wo=112, gatew=128, out=136, dbg=144, ws=152)
FR = 1024
WA = 0
WV = WA + 16*28*14*FR
XN = WV + 16*28*14*FR
XVO = XN + 64*28*FR
SEG_XVO = 16*448*64
TT = XVO + 64*SEG_XVO
SEG_T = 16*28*FR
MB = TT + 64*SEG_T
MSZ = 7168
MB2 = MB + 64*MSZ
PB = MB2 + 64*MSZ
PSZ = 12288
GB = PB + 64*PSZ
SEG_G = 28*8*FR
PT = GB + 64*SEG_G
SEG_PT = 2*24*FR
EB = PT + 64*SEG_PT
AB = EB + 64*448*8
SEG_A = 28*2*FR
GT = AB + 64*SEG_A
CNT = GT + 2048*4
CX, CT, CG, CP, CE, CA, CF = [CNT + i*64*128 for i in range(7)]
WS_END = CNT + 7*64*128
SENT = 0xFFFFFFFF

class Asm:
    def __init__(s): s.l = []; s.n = 0
    def __call__(s, *a):
        for x in a:
            for ln in x.split("\n"):
                if ln.strip(): s.l.append("    " + ln.strip())
    def lab(s, x): s.l.append(x + ":")
    def new(s, p="L"):
        s.n += 1; return f"{p}_{s.n}"
    def txt(s): return "\n".join(s.l) + "\n"

def vr(b, n=1): return f"v{b}" if n == 1 else f"v[{b}:{b+n-1}]"
def ar(b, n=1): return f"a{b}" if n == 1 else f"a[{b}:{b+n-1}]"
def sr(b, n=1): return f"s{b}" if n == 1 else f"s[{b}:{b+n-1}]"
def R(b, n=1):
    return vr(b, n) if b < 256 else ar(b-256, n)

def srd(A, d, karg, size, tmp=None):
    A(f"s_load_dwordx2 s[{d}:{d+1}], s[0:1], {karg}")
    A("s_waitcnt lgkmcnt(0)")
    A(f"s_and_b32 s{d+1}, s{d+1}, 0xffff", f"s_mov_b32 s{d+2}, {size}", f"s_mov_b32 s{d+3}, 0x00020000")

def srds(A, lst):
    for d, karg, size in lst: A(f"s_load_dwordx2 s[{d}:{d+1}], s[0:1], {karg}")
    A("s_waitcnt lgkmcnt(0)")
    for d, karg, size in lst: A(f"s_and_b32 s{d+1}, s{d+1}, 0xffff", f"s_mov_b32 s{d+2}, {size}", f"s_mov_b32 s{d+3}, 0x00020000")

def kdesc(name, vgpr, accum, sgpr=102):
    return f"""
.p2align 6
.amdhsa_kernel {name}
  .amdhsa_next_free_vgpr {vgpr}
  .amdhsa_next_free_sgpr {sgpr}
  .amdhsa_accum_offset {accum}
  .amdhsa_group_segment_fixed_size 0
  .amdhsa_kernarg_size 160
  .amdhsa_user_sgpr_count 2
  .amdhsa_user_sgpr_kernarg_segment_ptr 1
  .amdhsa_system_sgpr_workgroup_id_x 1
.end_amdhsa_kernel
"""
def khead(name):
    return f".globl {name}\n.p2align 8\n.type {name},@function\n{name}:\n"

import os
TIMING = int(os.environ.get('TIMING', 0))
def stamp(A, slot, cond_wave0=True):
    if not TIMING: return
    A("s_memrealtime s[60:61]", "s_waitcnt lgkmcnt(0)", "v_mov_b32 v2, s60", "s_mov_b64 s[62:63], exec", "s_mov_b64 exec, 1",
      "s_nop 4", f"v_mov_b32 v10, 0", f"buffer_store_dword v2, v10, s[8:11], 0 offen offset:{slot*4}", "s_mov_b64 exec, s[62:63]")

def tick(A, k):
    if TIMING < 2: return
    if TIMING == 3:
        A("s_memrealtime s[64:65]", "s_waitcnt lgkmcnt(0)", f"s_add_u32 s{70+k}, s{70+k}, s64"); return
    A("s_memtime s[64:65]", "s_waitcnt lgkmcnt(0)", "s_sub_u32 s66, s64, s68", f"s_add_u32 s{70+k}, s{70+k}, s66", "s_mov_b32 s68, s64")
def tick_init(A):
    if TIMING < 2: return
    A("s_memtime s[64:65]", "s_waitcnt lgkmcnt(0)", "s_mov_b32 s68, s64")
    for k in range(8): A(f"s_mov_b32 s{70+k}, 0")
def tick_dump(A, slot):
    if TIMING < 2: return
    A("s_mov_b64 s[62:63], exec", "s_mov_b64 exec, 1", "v_mov_b32 v10, 0")
    for k in range(8): A(f"v_mov_b32 v2, s{70+k}", f"buffer_store_dword v2, v10, s[8:11], 0 offen offset:{(slot+k)*4}", "s_nop 1")
    A("s_mov_b64 exec, s[62:63]")
```

```python
from common import *
def gen_k1(name):
    A = Asm()
    A("s_cmp_ge_u32 s2, 256", "s_cbranch_scc1 K1_END")
    srd(A, 4, KA['ws'], WS_END)
    A("v_and_b32 v1, 63, v0", "v_lshrrev_b32 v2, 6, v0", "s_nop 1", "v_readfirstlane_b32 s20, v2")
    A("v_and_b32 v3, 15, v1", "v_lshrrev_b32 v4, 4, v1")
    A("s_cmp_ge_u32 s2, 224", "s_cbranch_scc1 K1_MISC")
    A("s_cmp_ge_u32 s2, 112", "s_cselect_b32 s21, 1, 0")
    A("s_mul_i32 s16, s21, 112", "s_sub_u32 s16, s2, s16")
    A("s_mul_i32 s17, s16, 9363", "s_lshr_b32 s17, s17, 16")
    A("s_mul_i32 s18, s17, 7", "s_sub_u32 s18, s16, s18")
    A("v_lshrrev_b32 v5, 2, v3", "v_lshlrev_b32 v5, 3, v5", "v_and_b32 v6, 3, v3", "v_add_u32 v5, v5, v6",
      "v_lshlrev_b32 v5, 13, v5", "v_lshl_add_u32 v5, v4, 4, v5")
    def aloads(tag):
        for it in range(4):
            if it == 3: A("s_cmp_ge_u32 s20, 2", f"s_cbranch_scc1 {tag}")
            A(f"s_add_u32 s26, s20, {4*it}", "s_lshl_b32 s22, s26, 18", "s_lshl_b32 s23, s17, 9", "s_add_u32 s22, s22, s23")
            for o in range(2):
                for es in range(8):
                    A(f"buffer_load_dwordx4 {ar(64*it+(o*8+es)*4,4)}, v5, s[8:11], s22 offen offset:{es*64}")
                A(f"s_add_u32 s22, s22, {4*8192}")
        A.lab(tag)
    A("s_cmp_eq_u32 s21, 0", "s_cbranch_scc0 K1_VO")
    srds(A, [(8, KA['wq'], 448*8192), (12, KA['wk'], 448*8192)])
    for t in range(4):
        A(f"s_lshl_b32 s22, s18, 19", f"s_add_u32 s22, s22, {(32*(t//2)+4*(t%2))*8192}", "s_lshl_b32 s23, s17, 9", "s_add_u32 s22, s22, s23")
        for es in range(8):
            A(f"buffer_load_dwordx4 {vr(64+(t*8+es)*4,4)}, v5, s[12:15], s22 offen offset:{es*64}")
    A("s_mov_b32 s24, 0x3d800000", f"s_mov_b32 s25, {WA}", "s_branch K1_GEMM")
    A.lab("K1_VO")
    srds(A, [(8, KA['wv'], 448*8192), (12, KA['wo'], 16*256*896)])
    A("v_lshrrev_b32 v6, 3, v0", "v_and_b32 v7, 7, v0", "s_mov_b32 s22, 896", "v_mul_lo_u32 v8, v6, s22",
      "v_lshl_add_u32 v8, v7, 4, v8", "v_lshlrev_b32 v9, 7, v6", "v_lshl_add_u32 v9, v7, 4, v9")
    A("s_mul_i32 s22, s17, 229376", "s_lshl_b32 s23, s18, 7", "s_add_u32 s22, s22, s23")
    for i in range(8):
        A(f"buffer_load_dwordx4 {vr(192+4*i,4)}, v8, s[12:15], s22 offen", f"s_add_u32 s22, s22, {32*896}")
    for i in range(8):
        A(f"s_waitcnt vmcnt({7-i})", f"ds_write_b128 v9, {vr(192+4*i,4)} offset:{i*4096}")
    A("s_waitcnt lgkmcnt(0)", "s_barrier")
    A("v_lshrrev_b32 v6, 2, v3", "v_lshl_add_u32 v6, v4, 3, v6", "v_lshlrev_b32 v6, 7, v6", "v_and_b32 v7, 3, v3", "v_lshl_add_u32 v6, v7, 3, v6")
    for t in range(4):
        for es in range(8):
            b = 64+(t*8+es)*4
            A(f"ds_read_b64_tr_b16 {vr(b,2)}, v6 offset:{es*4096+t*32}", f"ds_read_b64_tr_b16 {vr(b+2,2)}, v6 offset:{es*4096+t*32+512}")
        A("s_waitcnt lgkmcnt(0)")
    A("s_mov_b32 s24, 1.0", f"s_mov_b32 s25, {WV}")
    A.lab("K1_GEMM")
    A("s_mul_i32 s22, s17, 28", "s_lshl_b32 s23, s18, 2", "s_add_u32 s22, s22, s23", f"s_mul_i32 s22, s22, {14*1024}", "s_add_u32 s25, s25, s22")
    A("v_lshlrev_b32 v7, 4, v1")
    A("s_mov_b32 s26, s20")
    A.lab("K1_KS")
    A("s_lshl_b32 s22, s26, 18", "s_lshl_b32 s23, s17, 9", "s_add_u32 s22, s22, s23")
    for o in range(2):
        for es in range(8):
            A(f"buffer_load_dwordx4 {vr(192+(o*8+es)*4,4)}, v5, s[8:11], s22 offen offset:{es*64}")
        A(f"s_add_u32 s22, s22, {4*8192}")
    for i in range(32): A(f"v_mov_b32 v{16+i}, 0")
    A("s_waitcnt vmcnt(0)")
    for es in range(8):
        for o in range(2):
            for t in range(4):
                d = 16+(o*4+t)*4
                A(f"v_mfma_f32_16x16x32_bf16 {vr(d,4)}, {vr(192+(o*8+es)*4,4)}, {vr(64+(t*8+es)*4,4)}, {vr(d,4)}")
    A("s_nop 7", "s_nop 3")
    A("s_lshl_b32 s22, s26, 10", "s_add_u32 s22, s22, s25")
    for t in range(4):
        for o in range(2):
            for r in range(4): A(f"v_mul_f32 v{16+(o*4+t)*4+r}, s24, v{16+(o*4+t)*4+r}")
        for o in range(2):
            d = 16+(o*4+t)*4
            A(f"v_cvt_pk_bf16_f32 v{48+4*t+2*o}, v{d}, v{d+1}", f"v_cvt_pk_bf16_f32 v{48+4*t+2*o+1}, v{d+2}, v{d+3}")
        A(f"buffer_store_dwordx4 {vr(48+4*t,4)}, v7, s[4:7], s22 offen", f"s_add_u32 s22, s22, {14*1024}")
    A("s_add_u32 s26, s26, 4", "s_cmp_lt_u32 s26, 14", "s_cbranch_scc1 K1_KS", "s_branch K1_END")
    A.lab("K1_MISC")
    A("s_sub_u32 s16, s2, 224")
    srd(A, 8, KA['x'], 2048*896)
    A("s_lshr_b32 s17, s20, 1", "s_lshl_b32 s18, s16, 1", "s_add_u32 s17, s17, s18", "s_and_b32 s18, s20, 1")
    A("s_lshl_b32 s19, s17, 1", "s_add_u32 s19, s19, s18")
    A("s_mul_i32 s22, s19, 14336", "s_mov_b32 s23, 896", "v_mul_lo_u32 v5, v3, s23", "v_lshl_add_u32 v5, v4, 4, v5")
    for kk in range(14): A(f"buffer_load_dwordx4 {vr(64+4*kk,4)}, v5, s[8:11], s22 offen offset:{kk*64}")
    A(f"s_add_u32 s22, s22, {XN}", "v_lshlrev_b32 v7, 4, v1")
    for kk in range(14):
        A(f"s_waitcnt vmcnt({13})" if kk == 0 else "s_waitcnt vmcnt(13)")
        A(f"buffer_store_dwordx4 {vr(64+4*kk,4)}, v7, s[4:7], s22 offen", "s_add_u32 s22, s22, 1024")
    for i in range(4): A(f"v_mov_b32 v{16+i}, -1", f"v_mov_b32 v{20+i}, 0")
    A("v_lshlrev_b32 v7, 4, v0", f"s_mul_i32 s22, s16, {13*4096}", f"s_add_u32 s22, s22, {MB}")
    for i in range(13): A("buffer_store_dwordx4 v[16:19], v7, s[4:7], s22 offen", "s_add_u32 s22, s22, 4096")
    A("s_cmp_eq_u32 s16, 1", "s_cbranch_scc0 K1_NOZ", f"s_mov_b32 s22, {CNT}")
    for i in range(14): A("buffer_store_dwordx4 v[20:23], v7, s[4:7], s22 offen", "s_add_u32 s22, s22, 4096")
    A.lab("K1_NOZ")
    A(f"s_mov_b32 s22, {MB}", "s_cmp_eq_u32 s16, 0", "s_cbranch_scc1 K1_MEM0", f"s_mov_b32 s22, {MB2}", "s_cmp_eq_u32 s16, 8", "s_cbranch_scc0 K1_END")
    A.lab("K1_MEM0")
    A("s_waitcnt vmcnt(0)", "s_barrier")
    srd(A, 8, KA['mem0'], 8*896)
    for rnd in range(2):
        A(f"v_add_u32 v5, {256*rnd}, v0", "v_lshrrev_b32 v6, 6, v5", "v_lshlrev_b32 v6, 7, v6",
          "v_bfe_u32 v8, v5, 4, 2", "v_lshl_add_u32 v6, v8, 5, v6", "v_bfe_u32 v8, v5, 3, 1", "v_lshl_add_u32 v6, v8, 2, v6",
          "v_and_b32 v8, 7, v5", "s_mov_b32 s23, 896", "v_mul_lo_u32 v8, v8, s23", "v_add_u32 v6, v6, v8", "v_lshlrev_b32 v9, 4, v5")
        if rnd == 1: A("v_cmp_gt_u32 vcc, 448, v5", "s_and_saveexec_b64 s[28:29], vcc", "s_cbranch_execz K1_END")
        for q in range(4): A(f"buffer_load_dword v{24+q}, v6, s[8:11], 0 offen offset:{8*q}")
        A("s_waitcnt vmcnt(0)", "buffer_store_dwordx4 v[24:27], v9, s[4:7], s22 offen", "s_nop 1")
    A.lab("K1_END")
    A("s_endpgm")
    return khead(name) + A.txt()
```
